```python
import torch

def _softmax(x, axis=-1):
    return torch.softmax(x, dim=axis)
def _gelu(x):
    return torch.nn.functional.gelu(x, approximate="tanh")
def _silu(x):
    return torch.nn.functional.silu(x)
def _sigmoid(x):
    return torch.sigmoid(x)
def _layernorm(x, axis=-1, eps=1e-5):
    m = x.mean(dim=axis, keepdim=True)
    v = x.var(dim=axis, keepdim=True, unbiased=False)
    return (x - m) / torch.sqrt(v + eps)
def _scatter_add(tgt, idx, src, axis=0):
    return tgt.clone().index_add_(axis, idx, src)
def _segment_sum(src, seg, n):
    out = torch.zeros((n,) + src.shape[1:], dtype=src.dtype)
    return out.index_add_(0, seg, src)
def _pad(x, pw):
    flat = tuple(v for pair in reversed(pw) for v in pair)
    return torch.nn.functional.pad(x, flat)

kernel_name = 'concat_heads__linear_kernel_hedgehog__softmax_full_mha__prompt'

def setup_inputs():

    _w = (lambda a: (lambda t: t.to(torch.bfloat16) if t.is_floating_point() else t)(torch.as_tensor(a)))
    def _A_setup():
        B, S, D, H = 1, 2048, 512, 32
        Dh = D // H
        return {
            "x": _w((lambda *s: torch.randn(*s, dtype=torch.bfloat16) * 0.8)(B, S, D)),
            "wqkv": _w((lambda *s: torch.randn(*s, dtype=torch.bfloat16) * 1.6)(D, 3 * D)),
            "w_phi": _w((lambda *s: torch.randn(*s, dtype=torch.bfloat16) * 1.6)(H, Dh, Dh) * (Dh ** -0.5)),
            "wo": _w((lambda *s: torch.randn(*s, dtype=torch.bfloat16) * 0.1)(D, D)),
        }
    _A_in = _A_setup()

    def _B_setup():
        B, S, D = 1, 2048, 512
        return {
            "x": _w((lambda *s: torch.randn(*s, dtype=torch.bfloat16) * 0.4)(B, S, D)),
            "wqkv": _w((lambda *s: torch.randn(*s, dtype=torch.bfloat16) * 0.4)(D, 3 * D)),
            "wo": _w((lambda *s: torch.randn(*s, dtype=torch.bfloat16) * 0.05)(D, D)),
        }
    _B_in = _B_setup()

    return {
        "A_x": _A_in["x"],
        "A_wqkv": _A_in["wqkv"],
        "A_w_phi": _A_in["w_phi"],
        "A_wo": _A_in["wo"],
        "B_x": _B_in["x"],
        "B_wqkv": _B_in["wqkv"],
        "B_wo": _B_in["wo"],
    }

def reference(A_x, A_wqkv, A_w_phi, A_wo, B_x, B_wqkv, B_wo):
    def _A_ref(x, wqkv, w_phi, wo):
        B, S, D = x.shape
        H = 32; Dh = D // H
        qkv = (lambda x, *d: x.permute(*d))((x @ wqkv).reshape(B, S, 3, H, Dh), 2, 0, 3, 1, 4)
        q, k, v = qkv[0], qkv[1], qkv[2]
        pq = torch.einsum("bhsd,hdf->bhsf", q, w_phi)
        pk = torch.einsum("bhsd,hdf->bhsf", k, w_phi)
        phi_q = torch.concatenate([_softmax(pq, axis=-1), _softmax(-pq, axis=-1)], axis=-1)
        phi_k = torch.concatenate([_softmax(pk, axis=-1), _softmax(-pk, axis=-1)], axis=-1)
        kv = torch.einsum("bhsf,bhsd->bhfd", phi_k, v)
        z  = torch.einsum("bhsf->bhf", phi_k)
        num = torch.einsum("bhqf,bhfd->bhqd", phi_q, kv)
        den = torch.einsum("bhqf,bhf->bhq", phi_q, z)[..., None] + 1e-6
        o = num / den
        return (lambda x, *d: x.permute(*d))(o, 0, 2, 1, 3).reshape(B, S, D) @ wo

    def _B_ref(x, wqkv, wo):
        B, S, D = x.shape
        H = 32; Dh = D // H
        qkv = (lambda x, *d: x.permute(*d))((x @ wqkv).reshape(B, S, 3, H, Dh), 2, 0, 3, 1, 4)
        q, k, v = qkv[0], qkv[1], qkv[2]
        scale = Dh ** -0.5
        scores = torch.einsum("bhqd,bhkd->bhqk", q, k) * scale
        p = _softmax(scores, axis=-1)
        o = torch.einsum("bhqk,bhkd->bhqd", p, v)
        return (lambda x, *d: x.permute(*d))(o, 0, 2, 1, 3).reshape(B, S, D) @ wo

    a = _A_ref(A_x, A_wqkv, A_w_phi, A_wo)
    b = _B_ref(B_x, B_wqkv, B_wo)
    return torch.concatenate([a, b], axis=-1)
```

```python
import re

TRANS = ("v_exp_", "v_log_", "v_rcp_", "v_rsq_", "v_sqrt_", "v_sin_", "v_cos_")


def regs_of(tok):
    tok = tok.strip()
    tok = re.sub(r"^-|^neg\(|^abs\(|^\||\)$|\|$", "", tok)
    tok = re.sub(r"^abs\(|^\|", "", tok)
    m = re.fullmatch(r"([vsa])(\d+)", tok)
    if m:
        return {(m.group(1), int(m.group(2)))}
    m = re.fullmatch(r"([vsa])\[(\d+):(\d+)\]", tok)
    if m:
        return {(m.group(1), i) for i in range(int(m.group(2)), int(m.group(3)) + 1)}
    if tok == "vcc":
        return {("s", "vcc")}
    if tok == "exec":
        return {("s", "exec")}
    if tok == "m0":
        return {("s", "m0")}
    return set()


def split_ops(s):
    out, depth, cur = [], 0, ""
    for ch in s:
        if ch in "[(":
            depth += 1
        if ch in "])":
            depth -= 1
        if ch == "," and depth == 0:
            out.append(cur.strip())
            cur = ""
        else:
            cur += ch
    if cur.strip():
        out.append(cur.strip())
    return out


class Ins:
    def __init__(self, text):
        self.text = text
        t = text.split(";")[0].strip()
        parts = t.split(None, 1)
        self.op = parts[0]
        rest = parts[1] if len(parts) > 1 else ""
        ops = split_ops(rest)
        if ops:
            last = ops[-1].split()
            self.mods = last[1:]
            ops[-1] = last[0]
        else:
            self.mods = []
        self.ops = ops
        op = self.op
        self.is_mfma = op.startswith("v_mfma") or op.startswith("v_smfmac")
        self.is_valu = op.startswith("v_") and not self.is_mfma
        self.is_trans = op.startswith(TRANS)
        self.is_vmem = op.startswith(("buffer_", "global_"))
        self.is_ds = op.startswith("ds_")
        self.is_salu = op.startswith("s_")
        self.is_perm = op.startswith("v_permlane")
        self.is_dpp = "_dpp" in op or any(m.startswith(("row_", "quad_perm", "wave_")) for m in self.mods)
        self.states = 1
        if op == "s_nop":
            self.states = int(ops[0], 0) + 1
        R = [regs_of(o) for o in ops]
        self.w, self.r = set(), set()
        self.mA = self.mB = self.mC = set()
        self.passes = 0
        self.wide_store = False
        self.lds_dma = False
        if self.is_mfma:
            self.w = R[0]
            self.mA, self.mB = R[1], R[2]
            if op.startswith("v_smfmac"):
                self.mC = R[0]
                self.mB = R[2] | R[3]
            else:
                self.mC = R[3]
            self.r = self.mA | self.mB | self.mC
            self.passes = 8 if "32x32" in op else 4
        elif self.is_valu:
            if op.startswith("v_cmp"):
                self.w = R[0]
                self.r = set().union(*R[1:])
            elif self.is_perm:
                self.w = R[0] | R[1]
                self.r = R[0] | R[1]
            elif op.startswith(("v_add_co", "v_addc_co", "v_sub_co")):
                self.w = R[0] | R[1]
                self.r = set().union(*R[2:])
            else:
                self.w = R[0]
                self.r = set().union(*R[1:]) if len(R) > 1 else set()
                if op.startswith(("v_fmac", "v_writelane")):
                    self.r |= R[0]
        elif self.is_vmem:
            if "lds" in self.mods or "load_lds" in op:
                self.lds_dma = True
                self.r = set().union(*R) | {("s", "m0")}
            elif "load" in op:
                self.w = R[0]
                self.r = set().union(*R[1:])
            else:
                self.r = set().union(*R)
                if op.endswith(("x3", "x4")):
                    self.wide_store = True
                    self.sdata = R[0] if op.startswith("buffer_") else R[1]
                if "atomic" in op and "sc0" in self.mods:
                    self.w = R[0]
        elif self.is_ds:
            if op.startswith(("ds_read", "ds_bpermute", "ds_permute", "ds_swizzle")):
                self.w = R[0]
                self.r = set().union(*R[1:])
            else:
                self.r = set().union(*R)
        elif self.is_salu:
            if op.startswith(("s_cmp", "s_cbranch", "s_branch", "s_waitcnt", "s_nop", "s_barrier",
                              "s_setprio", "s_endpgm", "s_sleep", "s_bitcmp")):
                self.r = set().union(*R) if R else set()
            else:
                self.w = R[0] if R else set()
                self.r = set().union(*R[1:]) if len(R) > 1 else set()
                if "saveexec" in op:
                    self.w = self.w | {("s", "exec")}


def need(p, c):
    n = 0
    vw = {x for x in p.w if x[0] in "va"}
    sw = {x for x in p.w if x[0] == "s"}
    if p.is_valu:
        if c.is_mfma and vw & c.r:
            n = max(n, 2)
        if c.is_perm and vw & c.r:
            n = max(n, 2)
        if c.is_dpp and vw & c.r:
            n = max(n, 2)
        if c.op.startswith(("v_readlane", "v_readfirstlane")) and vw & c.r:
            n = max(n, 1)
        if p.is_trans and c.is_valu and not c.is_trans and vw & c.r:
            n = max(n, 1)
        if c.is_vmem and sw & c.r:
            n = max(n, 5)
        if c.is_valu and sw & c.r:
            n = max(n, 4 if c.op.startswith(("v_readlane", "v_writelane")) else 2)
        if c.is_salu and sw & c.r:
            n = max(n, 2)
        if c.op.startswith("s_cbranch_vcc") and ("s", "vcc") in sw:
            n = max(n, 4)
    if p.is_mfma:
        tab = {4: (8, 6, 3), 8: (12, 10, 7)}[p.passes]
        if c.is_mfma:
            if vw & (c.mA | c.mB):
                n = max(n, tab[0])
            if vw & c.mC and not (c.mC == vw and c.passes == p.passes):
                n = max(n, tab[1])
            if vw & c.w and not (vw & c.mC):
                if c.passes != p.passes:
                    n = max(n, tab[1])
        else:
            if vw & (c.r | c.w) and (c.is_valu or c.is_vmem or c.is_ds):
                n = max(n, tab[0])
            if c.is_valu and p.mC & c.w:
                n = max(n, tab[2])
    if p.is_salu and ("s", "m0") in sw and c.lds_dma:
        n = max(n, 1)
    if p.wide_store and (p.sdata & c.w) and not c.is_salu:
        n = max(n, 2)
    return n


class A:
    def __init__(self):
        self.L = []
        self.hist = []
        self.inserted = []
        self.auto = True

    def raw(self, s):
        self.L.append(s)

    def label(self, s):
        self.L.append(s + ":")

    def comment(self, s):
        self.L.append("  ; " + s)

    def nop(self, n):
        while n > 0:
            k = min(n, 16)
            self._emit(Ins(f"s_nop {k-1}"))
            n -= k

    def _emit(self, ins):
        self.L.append("  " + ins.text)
        self.hist.append(ins)
        if len(self.hist) > 40:
            self.hist.pop(0)

    def __call__(self, text):
        for line in text.strip().split("\n"):
            line = line.strip()
            if not line:
                continue
            if line.startswith(";"):
                self.L.append("  " + line)
                continue
            ins = Ins(line)
            dist, req = 0, 0
            for p in reversed(self.hist):
                k = need(p, ins)
                if k - dist > req:
                    req = k - dist
                dist += p.states
                if dist >= 24:
                    break
            if req > 0:
                self.inserted.append((len(self.L), req, line))
                self.nop(req)
            self._emit(ins)

    def text(self):
        return "\n".join(self.L) + "\n"
```

```python
import sys, struct, math
from asmlib import A

NAME = "concat_heads__linear_kernel_hedgehog__softmax_full_mha__prompt"
BR_STRIDE = 0x800000
Q_OFF, KV_OFF, O_OFF = 0, 0x200000, 0x600000
PART_OFF = 0x1000000
WS_BYTES = 0x1100000
LOG2E = 1.4426950408889634
M_OFF = 80.0


def f32(x):
    return "0x%08x" % struct.unpack("<I", struct.pack("<f", x))[0]


def vr(b, n):
    return f"v[{b}:{b+n-1}]" if n > 1 else f"v{b}"


def srd(a, d, lo, hi, size):
    a(f"s_mov_b32 s{d}, s{lo}")
    a(f"s_mov_b32 s{d+1}, s{hi}")
    a(f"s_mov_b32 s{d+2}, {hex(size)}")
    a(f"s_mov_b32 s{d+3}, 0x00020000")


def descriptor(name, vgpr, sgpr=102):
    acc = (vgpr + 3) // 4 * 4
    return f""".section .rodata,"a"
.p2align 6
.amdhsa_kernel {name}
  .amdhsa_next_free_vgpr {vgpr}
  .amdhsa_next_free_sgpr {sgpr}
  .amdhsa_accum_offset {acc}
  .amdhsa_group_segment_fixed_size 0
  .amdhsa_kernarg_size 80
  .amdhsa_user_sgpr_count 2
  .amdhsa_user_sgpr_kernarg_segment_ptr 1
  .amdhsa_system_sgpr_workgroup_id_x 1
.end_amdhsa_kernel
"""


def head(a, name):
    a.raw(".text")
    a.raw(f".globl {name}")
    a.raw(".p2align 8")
    a.raw(f".type {name},@function")
    a.label(name)


MFMA = "v_mfma_f32_32x32x16_bf16"


def k1(opt):
    a = A()
    name = "qkv_kernel"
    head(a, name)
    sW, sBR, sMB, sNB, sXg, sWg, sXl, sWl, sT, sSC = 24, 25, 26, 27, 28, 29, 30, 31, 32, 33
    sQo, sKo, sVo = 34, 35, 36
    X, W, WS = 12, 16, 20
    a("s_cmp_ge_u32 s2, 256")
    a("s_cbranch_scc1 qkv_end")
    a("s_load_dwordx4 s[4:7], s[0:1], 0")
    a("s_load_dwordx4 s[40:43], s[0:1], 32")
    a("s_load_dwordx2 s[8:9], s[0:1], 72")
    a(f"v_lshrrev_b32 v1, 6, v0")
    a(f"v_and_b32 v0, 63, v0")
    a(f"v_readfirstlane_b32 s{sW}, v1")
    a(f"s_and_b32 s3, s2, 7")
    a(f"s_lshr_b32 s{sT}, s2, 3")
    a(f"s_lshr_b32 s{sBR}, s3, 2")
    a(f"s_and_b32 s{sMB}, s3, 1")
    a(f"s_lshl_b32 s{sMB}, s{sMB}, 3")
    a(f"s_and_b32 s10, s{sT}, 7")
    a(f"s_add_u32 s{sMB}, s{sMB}, s10")
    a(f"s_bfe_u32 s{sNB}, s3, 0x10001")
    a(f"s_lshl_b32 s{sNB}, s{sNB}, 2")
    a(f"s_lshr_b32 s10, s{sT}, 3")
    a(f"s_add_u32 s{sNB}, s{sNB}, s10")
    vx0, vx1, vwq, vwk = 2, 3, 4, 5
    a(f"v_lshrrev_b32 v1, 3, v0")
    a(f"v_lshrrev_b32 v6, 4, v0")
    a(f"v_and_b32 v7, 7, v0")
    a(f"v_xor_b32 v8, v7, v6")
    a(f"v_lshlrev_b32 v8, 4, v8")
    a(f"v_lshl_add_u32 v{vx0}, v1, 10, v8")
    a(f"v_xor_b32 v{vx1}, 64, v{vx0}")
    a(f"v_and_b32 v8, 1, v6")
    a(f"v_lshlrev_b32 v8, 2, v8")
    a(f"v_xor_b32 v8, v7, v8")
    a(f"v_lshlrev_b32 v8, 4, v8")
    a(f"v_mul_u32_u24 v9, 3072, v1")
    a(f"v_add_u32 v{vwq}, v8, v9")
    a(f"v_xor_b32 v{vwk}, 32, v{vwq}")
    a(f"s_lshl_b32 s{sXg}, s{sMB}, 17")
    a(f"s_lshl_b32 s10, s{sW}, 15")
    a(f"s_add_u32 s{sXg}, s{sXg}, s10")
    a(f"s_mul_i32 s{sWg}, s{sW}, {16*3072}")
    a(f"s_lshl_b32 s10, s{sNB}, 7")
    a(f"s_add_u32 s{sWg}, s{sWg}, s10")
    a(f"s_lshl_b32 s{sXl}, s{sW}, 12")
    a(f"s_mul_i32 s{sWl}, s{sW}, 6144")
    a(f"s_add_u32 s{sWl}, s{sWl}, 65536")
    a("s_waitcnt lgkmcnt(0)")
    a(f"s_cmp_eq_u32 s{sBR}, 0")
    a(f"s_cselect_b32 s{X}, s4, s40")
    a(f"s_cselect_b32 s{X+1}, s5, s41")
    a(f"s_cselect_b32 s{W}, s6, s42")
    a(f"s_cselect_b32 s{W+1}, s7, s43")
    a(f"s_cselect_b32 s{sSC}, 1.0, {f32(0.25*LOG2E)}")
    a(f"s_mov_b32 s{X+2}, 0x200000")
    a(f"s_mov_b32 s{X+3}, 0x00020000")
    a(f"s_mov_b32 s{W+2}, 0x180000")
    a(f"s_mov_b32 s{W+3}, 0x00020000")

    def dma(stage):
        slot = stage % 4
        G = []
        for j in range(4):
            G.append(f"s_add_u32 m0, s{sXl}, {slot*16384 + j*1024}\n"
                     f"s_add_u32 s{sT}, s{sXg}, {j*8192 + stage*128}\n"
                     f"buffer_load_dwordx4 v{vx1 if j % 2 else vx0}, s[{X}:{X+3}], s{sT} offen lds")
        for g in range(3):
            for q in range(2):
                G.append(f"s_add_u32 m0, s{sWl}, {slot*24576 + (2*g+q)*1024}\n"
                         f"s_add_u32 s{sT}, s{sWg}, {(stage*64 + 8*q)*3072 + g*1024}\n"
                         f"buffer_load_dwordx4 v{vwk if g == 1 else vwq}, s[{W}:{W+3}], s{sT} offen lds")
        return G

    for st in range(4):
        for g in dma(st):
            a(g)
    a(f"s_lshl_b32 s10, s{sBR}, 23")
    a(f"s_add_u32 s8, s8, s10")
    a(f"s_addc_u32 s9, s9, 0")
    srd(a, WS, 8, 9, BR_STRIDE)
    ax = [10, 11, 12, 13]
    aw = [[14, 15], [16, 17], [18, 19]]
    vQ, vK, vV = 20, 21, 22
    a(f"s_and_b32 s10, s{sW}, 1")
    a(f"s_lshr_b32 s11, s{sW}, 1")
    a(f"v_and_b32 v1, 31, v0")
    a(f"v_lshrrev_b32 v6, 5, v0")
    a(f"v_bfe_u32 v7, v0, 1, 3")
    a(f"v_xor_b32 v7, v7, v6")
    a(f"s_lshl_b32 s3, s10, 13")
    a(f"v_lshl_add_u32 v8, v1, 7, s3")
    for ks in range(4):
        a(f"v_xor_b32 v9, {2*ks}, v7")
        a(f"v_lshl_add_u32 v{ax[ks]}, v9, 4, v8")
    a(f"v_bfe_u32 v7, v0, 4, 1")
    a(f"v_bfe_u32 v8, v0, 2, 2")
    a(f"v_lshl_add_u32 v9, v6, 3, v8")
    a(f"v_lshlrev_b32 v9, 7, v9")
    a(f"v_and_b32 v23, 3, v0")
    a(f"v_lshl_add_u32 v9, v23, 3, v9")
    a(f"v_add_u32 v9, 65536, v9")
    a(f"v_and_b32 v8, 2, v8")
    a(f"v_xor_b32 v8, v8, v7")
    a(f"s_lshl_b32 s3, s11, 1")
    a(f"v_xor_b32 v8, s3, v8")
    a(f"v_lshl_add_u32 v23, v8, 5, v9")
    a(f"v_add_u32 v{aw[2][0]}, 4096, v23")
    a(f"v_lshl_add_u32 v{aw[0][0]}, v7, 11, v23")
    a(f"v_xor_b32 v{aw[1][0]}, 32, v{aw[0][0]}")
    for t in range(3):
        a(f"v_add_u32 v{aw[t][1]}, 49152, v{aw[t][0]}")
    a(f"v_lshlrev_b32 v{vQ}, 4, v0")
    a(f"v_and_b32 v7, 0x33, v0")
    a(f"v_bfe_u32 v8, v0, 2, 1")
    a(f"v_lshl_or_b32 v7, v8, 3, v7")
    a(f"v_bfe_u32 v8, v0, 3, 1")
    a(f"v_lshl_or_b32 v7, v8, 2, v7")
    a(f"v_lshlrev_b32 v{vK}, 4, v7")
    a(f"v_and_b32 v7, 15, v0")
    a(f"v_lshlrev_b32 v7, 4, v7")
    a(f"v_lshl_add_u32 v7, v6, 9, v7")
    a(f"v_bfe_u32 v8, v0, 4, 1")
    a(f"v_lshl_add_u32 v{vV}, v8, 17, v7")
    a(f"s_lshl_b32 s{sMB}, s{sMB}, 2")
    a(f"s_lshl_b32 s10, s10, 1")
    a(f"s_add_u32 s{sMB}, s{sMB}, s10")
    a(f"s_lshl_b32 s{sNB}, s{sNB}, 2")
    a(f"s_add_u32 s{sNB}, s{sNB}, s3")
    a(f"s_lshl_b32 s{sQo}, s{sNB}, 16")
    a(f"s_lshl_b32 s10, s{sMB}, 10")
    a(f"s_add_u32 s{sQo}, s{sQo}, s10")
    a(f"s_lshl_b32 s{sKo}, s{sQo}, 1")
    a(f"s_add_u32 s{sKo}, s{sKo}, {KV_OFF}")

    FX = [[24, 28], [44, 48]]
    FW = [[32, 36, 40], [52, 56, 60]]
    ACC = [[64 + 16 * (3 * rbi + t) for t in range(3)] for rbi in range(2)]

    def reads(step):
        st, ks = divmod(step, 4)
        slot, s = st % 4, step % 2
        R = []
        for rbi in range(2):
            R.append(f"ds_read_b128 {vr(FX[s][rbi],4)}, v{ax[ks]} offset:{slot*16384 + rbi*4096}")
        for t in range(3):
            for half in range(2):
                R.append(f"ds_read_b64_tr_b16 {vr(FW[s][t]+2*half,2)}, v{aw[t][slot//2]} "
                         f"offset:{(slot%2)*24576 + ks*6144 + half*512}")
        return [R[0], R[2], R[3], R[4], R[5], R[1], R[6], R[7]]

    def mfmas(step):
        s = step % 2
        M = []
        for t, rbi in [(0, 0), (1, 0), (0, 1), (1, 1), (2, 0), (2, 1)]:
            d = vr(ACC[rbi][t], 16)
            c = d if step else "0"
            x, w = vr(FX[s][rbi], 4), vr(FW[s][t], 4)
            M.append(f"{MFMA} {d}, {w}, {x}, {c}" if t < 2 else f"{MFMA} {d}, {x}, {w}, {c}")
        return M

    vm = {0: 30, 1: 20, 2: 20, 3: 20, 4: 20, 5: 20, 6: 10, 7: 0}
    a(f"s_waitcnt vmcnt({vm[0]})")
    a("s_barrier")
    for r in reads(0):
        a(r)
    pend = []
    for step in range(32):
        a("s_waitcnt lgkmcnt(0)")
        nxt = step + 1
        R = []
        if nxt < 32:
            if nxt % 4 == 0:
                st = nxt // 4
                a(f"s_waitcnt vmcnt({vm[st]})")
                a("s_barrier")
                if st + 3 <= 7:
                    pend = dma(st + 3)
            R = reads(nxt)
        M = mfmas(step)
        for i, m in enumerate(M):
            a(m)
            for _ in range(2):
                if R:
                    a(R.pop(0))
            if i >= 2 and pend and (i < 5 or nxt % 4 == 0):
                a(pend.pop(0))
        if nxt % 4 == 3:
            assert not pend, (step, len(pend))
    T = 24
    k = 0
    for t, rbi in [(0, 0), (1, 0), (0, 1), (1, 1)]:
        d = ACC[rbi][t]
        q, kk = T + 8 * (k % 4), T + 8 * (k % 4) + 4
        k += 1
        for i in range(8):
            a(f"v_mul_f32 v{d+i}, s{sSC}, v{d+i}")
        for i in range(4):
            a(f"v_cvt_pk_bf16_f32 v{q+i}, v{d+2*i}, v{d+2*i+1}")
        a(f"s_add_u32 s{sT}, s{sQo}, {t*65536 + rbi*1024}")
        a(f"buffer_store_dwordx4 {vr(q,4)}, v{vQ}, s[{WS}:{WS+3}], s{sT} offen")
        for i in range(4):
            a(f"v_cvt_pk_bf16_f32 v{kk+i}, v{d+8+2*i}, v{d+8+2*i+1}")
        a(f"s_add_u32 s{sT}, s{sKo}, {t*131072 + rbi*2048}")
        a(f"buffer_store_dwordx4 {vr(kk,4)}, v{vK}, s[{WS}:{WS+3}], s{sT} offen")
    for rbi in range(2):
        d = ACC[rbi][2]
        a(f"s_add_u32 s{sT}, s{sKo}, {rbi*2048 + 1024}")
        for tt in range(2):
            for i in range(4):
                a(f"v_cvt_pk_bf16_f32 v{d+8*tt+i}, v{d+8*tt+2*i}, v{d+8*tt+2*i+1}")
            a(f"buffer_store_dwordx4 {vr(d+8*tt,4)}, v{vV}, s[{WS}:{WS+3}], s{sT} offen offset:{tt*256}")
    a.label("qkv_end")
    a("s_endpgm")
    return name, a, descriptor(name, 160), f"grid=(256,1,1) block=(256,1,1) lds=163840"


def k2(opt):
    a = A()
    name = "attn_kernel"
    head(a, name)
    sW, sH, sQB, sRB, sT, sFB, sT2 = 24, 25, 26, 27, 28, 29, 30
    sMK = 32
    sC0 = 34
    KV, WS, PH, DB = 12, 16, 20, 36
    SCR = 131072
    vL16, vKp, vLa, vIdx, vL8 = 1, 2, 3, 4, 5
    vLim = vKp
    Q, C, S, O, Kf, Vf, PQ = 8, 12, [28, 44], 60, [76, 80], [84, 92], 100
    TMP = 108
    a("s_cmp_ge_u32 s2, 256")
    a("s_cbranch_scc1 attn_end")
    a("s_load_dwordx2 s[4:5], s[0:1], 16")
    a("s_load_dwordx4 s[8:11], s[0:1], 64")
    a(f"v_lshrrev_b32 v1, 6, v0")
    a(f"v_and_b32 v0, 63, v0")
    a(f"v_readfirstlane_b32 s{sW}, v1")
    a(f"s_and_b32 s3, s2, 7")
    a(f"s_lshl_b32 s3, s3, 2")
    a(f"s_bfe_u32 s{sH}, s2, 0x20003")
    a(f"s_add_u32 s{sH}, s{sH}, s3")
    a(f"s_lshr_b32 s{sQB}, s2, 5")
    a(f"s_lshl_b32 s{sRB}, s{sQB}, 3")
    a(f"s_add_u32 s{sRB}, s{sRB}, s{sW}")
    a(f"s_mov_b32 s{sMK}, 0x0000ffff")
    a(f"s_mov_b32 s{sMK+1}, 0x0000ffff")
    a(f"s_mov_b32 s{sFB}, 0")
    a(f"v_lshlrev_b32 v{vL16}, 4, v0")
    a(f"v_lshlrev_b32 v{vL8}, 3, v0")
    a(f"v_and_b32 v7, 0x33, v0")
    a(f"v_bfe_u32 v6, v0, 2, 1")
    a(f"v_lshl_or_b32 v7, v6, 3, v7")
    a(f"v_bfe_u32 v6, v0, 3, 1")
    a(f"v_lshl_or_b32 v7, v6, 2, v7")
    a(f"v_lshlrev_b32 v{vKp}, 4, v7")
    a(f"v_and_b32 v6, 15, v0")
    a(f"v_lshlrev_b32 v6, 1, v6")
    a(f"v_lshrrev_b32 v7, 5, v0")
    a(f"v_lshl_add_u32 v6, v7, 7, v6")
    for i in range(16):
        a(f"v_mov_b32 v{Vf[0]+i}, 0x3f803f80")
    a("s_waitcnt lgkmcnt(0)")
    srd(a, PH, 4, 5, 16384)
    srd(a, WS, 10, 11, WS_BYTES)
    srd(a, DB, 8, 9, 256)
    a(f"s_lshl_b32 s3, s{sH}, 17")
    a(f"s_add_u32 s3, s3, {BR_STRIDE + KV_OFF}")
    a(f"s_add_u32 s{KV}, s10, s3")
    a(f"s_addc_u32 s{KV+1}, s11, 0")
    a(f"s_mov_b32 s{KV+2}, 131072")
    a(f"s_mov_b32 s{KV+3}, 0x00020000")
    WPL = TMP
    WP = 116
    KA, QA = Kf[0], Kf[1]
    VA = Vf[0]
    a(f"s_lshl_b32 s{sT}, s{sH}, 9")
    for j in range(8):
        d = 8 * (j // 4) + j % 4
        a(f"buffer_load_ushort v{WPL+j}, v6, s[{PH}:{PH+3}], s{sT} offen offset:{d*32}")
    a(f"s_lshl_b32 s3, s{sH}, 6")
    a(f"s_add_u32 s3, s3, s{sRB}")
    a(f"s_lshl_b32 s{sT}, s3, 11")
    a(f"s_add_u32 s{sT}, s{sT}, {KV_OFF}")
    a(f"buffer_load_dwordx4 {vr(KA,4)}, v{vKp}, s[{WS}:{WS+3}], s{sT} offen")
    a(f"s_mov_b64 exec, s[{sMK}:{sMK+1}]")
    a(f"buffer_load_dwordx4 {vr(VA,4)}, v{vL16}, s[{WS}:{WS+3}], s{sT} offen offset:1024")
    a(f"buffer_load_dwordx4 {vr(VA+4,4)}, v{vL16}, s[{WS}:{WS+3}], s{sT} offen offset:1280")
    a(f"s_mov_b64 exec, -1")
    a(f"s_lshl_b32 s{sT}, s3, 10")
    a(f"buffer_load_dwordx4 {vr(QA,4)}, v{vL16}, s[{WS}:{WS+3}], s{sT} offen")
    a(f"s_add_u32 s{sT}, s{sT}, {BR_STRIDE}")
    a(f"buffer_load_dwordx4 {vr(Q,4)}, v{vL16}, s[{WS}:{WS+3}], s{sT} offen")
    a(f"s_lshl_b32 m0, s{sW}, 10")
    for c in range(16):
        a(f"buffer_load_dwordx4 v{vL16}, s[{KV}:{KV+3}], m0 offen lds")
        if c < 15:
            a(f"s_add_u32 m0, m0, 8192")
    a(f"v_mov_b32 v{vIdx}, 0xdddddddd")
    a(f"v_mov_b32 v{vLim}, 0x7e800000")
    a(f"v_mov_b32 v{vLa}, v{vL16}")
    ID = O
    a(f"v_and_b32 v6, 31, v0")
    a(f"v_lshlrev_b32 v7, 2, v7")
    a(f"v_sub_u32 v6, v6, v7")
    a(f"v_mov_b32 v7, 0x3f80")
    for t in range(2):
        for rr, base in enumerate([0, 2, 8, 10]):
            r = ID + 4 * t + rr
            a(f"v_subrev_u32 v{r}, {16*t+base}, v6")
            a(f"v_cmp_gt_u32 s[{sC0}:{sC0+1}], 2, v{r}")
            a(f"v_lshlrev_b32 v{r}, 4, v{r}")
            a(f"v_lshlrev_b32 v{r}, v{r}, v7")
            a(f"v_cndmask_b32 v{r}, 0, v{r}, s[{sC0}:{sC0+1}]")
    vC = 7
    a(f"v_mov_b32 v{vC}, {f32(LOG2E)}")
    a("s_waitcnt vmcnt(21)")
    for i in range(4):
        a(f"v_lshl_or_b32 v{WP+i}, v{WPL+2*i+1}, 16, v{WPL+2*i}")

    def phi(src, T, E, out):
        x, y, z = TMP, TMP + 1, TMP + 2
        a(f"{MFMA} {vr(T,16)}, {vr(WP,4)}, {vr(src,4)}, 0")
        if opt.get("round_p"):
            for i in range(4):
                a(f"v_cvt_pk_bf16_f32 v{T+8+i}, v{T+2*i}, v{T+2*i+1}")
            for i in range(4):
                a(f"v_lshlrev_b32 v{T+2*i}, 16, v{T+8+i}")
                a(f"v_and_b32 v{T+2*i+1}, 0xffff0000, v{T+8+i}")
        a(f"v_max3_f32 v{x}, v{T}, v{T+1}, v{T+2}")
        a(f"v_max3_f32 v{y}, -v{T}, -v{T+1}, -v{T+2}")
        a(f"v_max3_f32 v{x}, v{x}, v{T+3}, v{T+4}")
        a(f"v_max3_f32 v{y}, v{y}, -v{T+3}, -v{T+4}")
        a(f"v_max3_f32 v{x}, v{x}, v{T+5}, v{T+6}")
        a(f"v_max3_f32 v{y}, v{y}, -v{T+5}, -v{T+6}")
        a(f"v_max_f32 v{x}, v{x}, v{T+7}")
        a(f"v_max_f32_e64 v{y}, v{y}, -v{T+7}")
        a(f"v_permlane32_swap_b32 v{x}, v{y}")
        a(f"v_max_f32 v{x}, v{x}, v{y}")
        a(f"v_mul_f32 v{x}, v{vC}, v{x}")
        a(f"v_mov_b32 v{y}, v{x}")
        a(f"v_permlane32_swap_b32 v{x}, v{y}")
        for i in range(8):
            a(f"v_fma_f32 v{E+i}, v{T+i}, v{vC}, -v{x}")
            a(f"v_fma_f32 v{E+8+i}, -v{T+i}, v{vC}, -v{y}")
        for i in range(16):
            a(f"v_exp_f32 v{E+i}, v{E+i}")
        a(f"v_add_f32 v{T}, v{E}, v{E+1}")
        a(f"v_add_f32 v{T+1}, v{E+2}, v{E+3}")
        a(f"v_add_f32 v{T+2}, v{E+4}, v{E+5}")
        a(f"v_add_f32 v{T+3}, v{E+6}, v{E+7}")
        a(f"v_add_f32 v{T+4}, v{E+8}, v{E+9}")
        a(f"v_add_f32 v{T+5}, v{E+10}, v{E+11}")
        a(f"v_add_f32 v{T+6}, v{E+12}, v{E+13}")
        a(f"v_add_f32 v{T+7}, v{E+14}, v{E+15}")
        a(f"v_add_f32 v{T}, v{T}, v{T+1}")
        a(f"v_add_f32 v{T+2}, v{T+2}, v{T+3}")
        a(f"v_add_f32 v{T+4}, v{T+4}, v{T+5}")
        a(f"v_add_f32 v{T+6}, v{T+6}, v{T+7}")
        a(f"v_add_f32 v{x}, v{T}, v{T+2}")
        a(f"v_add_f32 v{y}, v{T+4}, v{T+6}")
        a(f"v_permlane32_swap_b32 v{x}, v{y}")
        a(f"v_add_f32 v{x}, v{x}, v{y}")
        a(f"v_rcp_f32 v{x}, v{x}")
        a(f"v_mov_b32 v{y}, v{x}")
        a(f"v_permlane32_swap_b32 v{x}, v{y}")
        for i in range(8):
            a(f"v_mul_f32 v{E+i}, v{E+i}, v{x}")
            a(f"v_mul_f32 v{E+8+i}, v{E+8+i}, v{y}")
        for i in range(8):
            a(f"v_cvt_pk_bf16_f32 v{out+i}, v{E+2*i}, v{E+2*i+1}")

    a("s_waitcnt vmcnt(20)")
    PK = 120
    phi(KA, S[0], S[1], PK)
    a(f"{MFMA} {vr(C,16)}, {vr(PK,4)}, {vr(ID,4)}, 0")
    a(f"{MFMA} {vr(C,16)}, {vr(PK+4,4)}, {vr(ID+4,4)}, {vr(C,16)}")
    a("s_waitcnt vmcnt(17)")
    phi(QA, S[0], S[1], PQ)
    for i in range(8):
        a(f"v_cvt_pk_bf16_f32 v{PK+i}, v{C+2*i}, v{C+2*i+1}")
    a(f"{MFMA} {vr(C,16)}, {vr(PK,4)}, {vr(VA,4)}, 0")
    a(f"{MFMA} {vr(C,16)}, {vr(PK+4,4)}, {vr(VA+4,4)}, {vr(C,16)}")
    a(f"s_lshl_b32 s3, s{sW}, 12")
    a(f"s_add_u32 s3, s3, {SCR}")
    a(f"v_add_u32 v6, s3, v{vL8}")
    for p in range(8):
        a(f"ds_write_b64 v6, {vr(C+2*p,2)} offset:{p*512}")
    SEG1 = opt.get("seg1", 16)
    rounds = (SEG1 + 2 + 3) // 4
    a(f"s_waitcnt vmcnt({16-rounds}) lgkmcnt(0)")
    a("s_barrier")
    a(f"s_lshl_b32 s3, s{sW}, 9")
    a(f"s_add_u32 s3, s3, {SCR}")
    a(f"v_add_u32 v6, s3, v{vL8}")
    for p in range(8):
        a(f"ds_read_b64 {vr(S[1]+2*p,2)}, v6 offset:{p*4096}")
    a(f"ds_read_b128 {vr(Kf[0],4)}, v{vLa}")
    a(f"s_lshl_b32 s{sT2}, s{sH}, 15")
    a(f"s_lshl_b32 s3, s{sW}, 9")
    a(f"s_add_u32 s{sT2}, s{sT2}, s3")
    a(f"s_add_u32 s{sT2}, s{sT2}, {PART_OFF}")
    a(f"s_lshl_b32 s3, s{sQB}, 12")
    a(f"s_add_u32 s{sT}, s{sT2}, s3")
    a("s_waitcnt lgkmcnt(0)")
    a(f"{MFMA} {vr(S[0],16)}, {vr(Kf[0],4)}, {vr(Q,4)}, 0")
    s1 = S[1]
    for step in (8, 4, 2):
        for i in range(step):
            a(f"v_add_f32 v{s1+i}, v{s1+i}, v{s1+i+step}")
    a(f"buffer_store_dwordx2 {vr(s1,2)}, v{vL8}, s[{WS}:{WS+3}], s{sT} offen sc1")
    x, y = TMP, TMP + 1
    s0 = S[0]
    a(f"v_max3_f32 v{x}, v{s0}, v{s0+1}, v{s0+2}")
    a(f"v_max3_f32 v{y}, v{s0+3}, v{s0+4}, v{s0+5}")
    for i in range(2):
        a(f"v_max3_f32 v{x}, v{x}, v{s0+6+4*i}, v{s0+7+4*i}")
        a(f"v_max3_f32 v{y}, v{y}, v{s0+8+4*i}, v{s0+9+4*i}")
    a(f"v_max3_f32 v{x}, v{x}, v{s0+14}, v{s0+15}")
    a(f"v_max_f32 v{x}, v{x}, v{y}")
    a(f"v_add_f32 v{x}, {f32(M_OFF)}, v{x}")
    a.label("attn_restart")
    a(f"v_mov_b32 v{y}, v{x}")
    a(f"v_permlane32_swap_b32 v{x}, v{y}")
    a(f"v_max_f32 v{x}, v{x}, v{y}")
    for i in range(16):
        a(f"v_sub_f32 v{C+i}, 0, v{x}")
    a(f"ds_read_b128 {vr(Kf[0],4)}, v{vLa}")
    a(f"ds_read_b128 {vr(Kf[1],4)}, v{vLa} offset:2048")
    a(f"s_mov_b64 exec, s[{sMK}:{sMK+1}]")
    a(f"ds_read_b128 {vr(Vf[0],4)}, v{vLa} offset:1024")
    a(f"ds_read_b128 {vr(Vf[0]+4,4)}, v{vLa} offset:1280")
    a(f"s_mov_b64 exec, -1")
    for i in range(16):
        a(f"v_mov_b32 v{O+i}, 0")
    a("s_waitcnt lgkmcnt(3)")
    a(f"{MFMA} {vr(S[0],16)}, {vr(Kf[0],4)}, {vr(Q,4)}, {vr(C,16)}")
    a.nop(10)

    SM = "v_smfmac_f32_32x32x32_bf16"
    base = [0]

    def lds_off(t):
        return (t - base[0]) * 2048

    def tile(t):
        b, nb = t % 2, 1 - t % 2
        e = [f"v_exp_f32 v{S[b]+i}, v{S[b]+i}" for i in range(16)]
        a("s_waitcnt lgkmcnt(0)")
        a(e[0]); a(e[1])
        if t > 0:
            a(f"{SM} {vr(O,16)}, {vr(Vf[nb]+4,4)}, {vr(S[nb]+8,8)}, v{vIdx}")
        if t + 1 < 64:
            a(f"s_mov_b64 exec, s[{sMK}:{sMK+1}]")
            a(f"ds_read_b128 {vr(Vf[nb],4)}, v{vLa} offset:{lds_off(t+1)+1024}")
            a(f"ds_read_b128 {vr(Vf[nb]+4,4)}, v{vLa} offset:{lds_off(t+1)+1280}")
            a(f"s_mov_b64 exec, -1")
        for i in range(2, 6):
            a(e[i])
        if t + 1 < 64:
            a(f"{MFMA} {vr(S[nb],16)}, {vr(Kf[nb],4)}, {vr(Q,4)}, {vr(C,16)}")
        if t + 2 == 32:
            a(f"v_add_u32 v{vLa}, 65536, v{vLa}")
            base[0] = 32
        if t + 2 < 64:
            a(f"ds_read_b128 {vr(Kf[b],4)}, v{vLa} offset:{lds_off(t+2)}")
        for i in range(6, 11):
            a(e[i])
        a(f"{SM} {vr(O,16)}, {vr(Vf[b],4)}, {vr(S[b],8)}, v{vIdx}")
        for i in range(11, 16):
            a(e[i])

    def job_barrier2():
        a(f"s_cmp_lg_u32 s{sFB}, 0")
        a("s_cbranch_scc1 attn_j2_skip")
        a("s_waitcnt vmcnt(0)")
        a("s_barrier")
        a(f"s_cmp_lg_u32 s{sW}, 0")
        a("s_cbranch_scc1 attn_j2_skip")
        a(f"s_lshl_b32 s3, s{sH}, 2")
        a(f"v_mov_b32 v{TMP}, 1")
        a(f"v_mov_b32 v{TMP+1}, s3")
        a("s_mov_b64 exec, 1")
        a(f"buffer_atomic_add v{TMP}, v{TMP+1}, s[{DB}:{DB+3}], 0 offen sc1")
        a("s_mov_b64 exec, -1")
        a.label("attn_j2_skip")

    def job_gather():
        a(f"s_cmp_lg_u32 s{sFB}, 0")
        a("s_cbranch_scc1 attn_j3_skip")
        a(f"s_lshl_b32 s3, s{sH}, 2")
        a(f"v_mov_b32 v{TMP+1}, s3")
        a.label("attn_poll")
        a(f"buffer_load_dword v{TMP}, v{TMP+1}, s[{DB}:{DB+3}], 0 offen sc1")
        a("s_waitcnt vmcnt(0)")
        a(f"v_readfirstlane_b32 s3, v{TMP}")
        a("s_cmp_ge_u32 s3, 8")
        a("s_cbranch_scc1 attn_polled")
        a("s_branch attn_poll")
        a.label("attn_polled")
        for qb in range(8):
            a(f"s_add_u32 s3, s{sT2}, {qb*4096}")
            a(f"buffer_load_dwordx2 {vr(TMP+2*qb,2)}, v{vL8}, s[{WS}:{WS+3}], s3 offen sc1")
        a(f"s_lshr_b32 s3, s{sW}, 2")
        a(f"s_lshl_b32 s3, s3, 10")
        a(f"s_and_b32 s{sT}, s{sW}, 3")
        a(f"s_lshl_b32 s{sT}, s{sT}, 2")
        a(f"s_add_u32 s3, s3, s{sT}")
        a(f"s_add_u32 s3, s3, {SCR}")
        a(f"v_add_u32 v6, s3, v{vL16}")
        a("s_waitcnt vmcnt(0)")
        for step in (8, 4, 2):
            for i in range(step):
                a(f"v_add_f32 v{TMP+i}, v{TMP+i}, v{TMP+i+step}")
        a(f"v_cvt_pk_bf16_f32 v{TMP}, v{TMP}, v{TMP+1}")
        a(f"ds_write_b32 v6, v{TMP}")
        a.label("attn_j3_skip")

    def job_oa():
        a(f"s_cmp_lg_u32 s{sFB}, 0")
        a("s_cbranch_scc1 attn_j4_skip")
        a("s_waitcnt lgkmcnt(0)")
        a("s_barrier")
        a(f"v_add_u32 v6, {SCR}, v{vL16}")
        a(f"ds_read_b128 {vr(TMP,4)}, v6")
        a(f"ds_read_b128 {vr(TMP+4,4)}, v6 offset:1024")
        a(f"s_lshl_b32 s3, s{sRB}, 5")
        a(f"s_add_u32 s3, s3, s{sH}")
        a(f"s_lshl_b32 s3, s3, 10")
        a(f"s_add_u32 s3, s3, {O_OFF}")
        a("s_waitcnt lgkmcnt(0)")
        ND = 116
        a(f"{MFMA} {vr(ND,16)}, {vr(TMP,4)}, {vr(PQ,4)}, 0")
        a(f"{MFMA} {vr(ND,16)}, {vr(TMP+4,4)}, {vr(PQ+4,4)}, {vr(ND,16)}")
        a(f"v_add_f32 v{ND+8}, {f32(1e-6)}, v{ND+8}")
        a(f"v_rcp_f32 v{ND+8}, v{ND+8}")
        for i in range(8):
            a(f"v_mul_f32 v{ND+i}, v{ND+i}, v{ND+8}")
        for i in range(4):
            a(f"v_cvt_pk_bf16_f32 v{TMP+i}, v{ND+2*i}, v{ND+2*i+1}")
        a(f"buffer_store_dwordx4 {vr(TMP,4)}, v{vL16}, s[{WS}:{WS+3}], s3 offen")
        a.label("attn_j4_skip")

    plan = opt.get("plan") or {0: ("p3",), 10: ("p2",), 14: ("p1",), SEG1: ("b2", "p3"), 36: ("g",), 40: ("p2",),
                               48: ("p1",), 52: ("oa", "p3"), 60: ("p2",), 62: ("p1",)}
    for t in range(64):
        for act in plan.get(t, ()):
            if act[0] == "p":
                a(f"s_setprio {act[1]}")
            elif act == "b2":
                job_barrier2()
            elif act == "g":
                job_gather()
            elif act == "oa":
                job_oa()
        tile(t)
    a(f"s_lshl_b32 s3, s{sRB}, 5")
    a(f"s_add_u32 s3, s3, s{sH}")
    a(f"{SM} {vr(O,16)}, {vr(Vf[1]+4,4)}, {vr(S[1]+8,8)}, v{vIdx}")
    a(f"s_lshl_b32 s3, s3, 10")
    a(f"s_add_u32 s3, s3, {BR_STRIDE + O_OFF}")
    a(f"s_cmp_lg_u32 s{sFB}, 0")
    a("s_cbranch_scc1 attn_final")
    a(f"v_add_f32_e64 v{x}, abs(v{O}), abs(v{O+1})")
    a(f"v_add_f32_e64 v{y}, abs(v{O+2}), abs(v{O+3})")
    a(f"v_add_f32_e64 v{x}, v{x}, abs(v{O+4})")
    a(f"v_add_f32_e64 v{y}, v{y}, abs(v{O+5})")
    a(f"v_add_f32_e64 v{x}, v{x}, abs(v{O+6})")
    a(f"v_add_f32_e64 v{y}, v{y}, abs(v{O+7})")
    a(f"v_add_f32 v{x}, v{x}, v{O+8}")
    a(f"v_add_f32 v{x}, v{x}, v{y}")
    a(f"v_cmp_nle_f32 vcc, v{x}, v{vLim}")
    a("s_cbranch_vccz attn_final")
    a(f"s_mov_b32 s{sFB}, 1")
    a(f"v_mov_b32 v{vLa}, v{vL16}")
    a(f"v_mov_b32 v{x}, 0xff800000")
    a(f"s_mov_b32 s3, 64")
    a.label("attn_maxloop")
    a(f"ds_read_b128 {vr(Kf[0],4)}, v{vLa}")
    a(f"v_add_u32 v{vLa}, 2048, v{vLa}")
    a("s_waitcnt lgkmcnt(0)")
    a(f"{MFMA} {vr(S[0],16)}, {vr(Kf[0],4)}, {vr(Q,4)}, 0")
    for i in range(8):
        a(f"v_max3_f32 v{x}, v{x}, v{s0+2*i}, v{s0+2*i+1}")
    a("s_sub_u32 s3, s3, 1")
    a("s_cmp_lg_u32 s3, 0")
    a("s_cbranch_scc1 attn_maxloop")
    a(f"v_mov_b32 v{vLa}, v{vL16}")
    a("s_branch attn_restart")
    a.label("attn_final")
    a.nop(12)
    a(f"v_rcp_f32 v{x}, v{O+8}")
    for i in range(8):
        a(f"v_mul_f32 v{O+i}, v{O+i}, v{x}")
    for i in range(4):
        a(f"v_cvt_pk_bf16_f32 v{TMP+4+i}, v{O+2*i}, v{O+2*i+1}")
    a(f"buffer_store_dwordx4 {vr(TMP+4,4)}, v{vL16}, s[{WS}:{WS+3}], s3 offen")
    a.label("attn_end")
    a("s_endpgm")
    return name, a, descriptor(name, 136), f"grid=(256,1,1) block=(512,1,1) lds=163840"


def k3(opt):
    a = A()
    name = "proj_kernel"
    head(a, name)
    sW, sBR, sRB, sNB, sT, sOg, sWg = 24, 25, 26, 27, 28, 29, 30
    W, WS, OUT = 12, 16, 20
    a("s_cmp_ge_u32 s2, 256")
    a("s_cbranch_scc1 proj_end")
    a("s_load_dwordx2 s[4:5], s[0:1], 24")
    a("s_load_dwordx4 s[8:11], s[0:1], 48")
    a("s_load_dwordx2 s[6:7], s[0:1], 72")
    a(f"v_lshrrev_b32 v1, 6, v0")
    a(f"v_and_b32 v0, 63, v0")
    a(f"v_readfirstlane_b32 s{sW}, v1")
    a(f"s_bfe_u32 s{sBR}, s2, 0x10002")
    a(f"s_and_b32 s{sRB}, s2, 3")
    a(f"s_lshl_b32 s{sRB}, s{sRB}, 2")
    a(f"s_bfe_u32 s3, s2, 0x20003")
    a(f"s_add_u32 s{sRB}, s{sRB}, s3")
    a(f"s_lshl_b32 s{sRB}, s{sRB}, 2")
    a(f"s_add_u32 s{sRB}, s{sRB}, s{sW}")
    a(f"s_lshr_b32 s{sNB}, s2, 5")
    vL16, vw, aw0, aw1, vO = 1, 2, 3, 4, 5
    a(f"v_lshlrev_b32 v{vL16}, 4, v0")
    a(f"v_lshrrev_b32 v6, 3, v0")
    a(f"v_bfe_u32 v7, v0, 4, 1")
    a(f"v_lshlrev_b32 v8, 1, v7")
    a(f"v_and_b32 v9, 7, v0")
    a(f"v_xor_b32 v8, v8, v9")
    a(f"v_lshlrev_b32 v8, 4, v8")
    a(f"v_lshl_add_u32 v{vw}, v6, 10, v8")
    a(f"s_lshl_b32 s{sOg}, s{sRB}, 15")
    a(f"s_lshl_b32 s3, s{sBR}, 23")
    a(f"s_add_u32 s{sOg}, s{sOg}, s3")
    a(f"s_add_u32 s{sOg}, s{sOg}, {O_OFF}")
    a(f"s_lshl_b32 s{sWg}, s{sW}, 13")
    a(f"s_lshl_b32 s3, s{sNB}, 7")
    a(f"s_add_u32 s{sWg}, s{sWg}, s3")
    a(f"s_lshl_b32 m0, s{sW}, 10")
    a("s_waitcnt lgkmcnt(0)")
    a(f"s_cmp_eq_u32 s{sBR}, 0")
    a(f"s_cselect_b32 s{W}, s4, s8")
    a(f"s_cselect_b32 s{W+1}, s5, s9")
    a(f"s_mov_b32 s{W+2}, 0x80000")
    a(f"s_mov_b32 s{W+3}, 0x00020000")
    srd(a, WS, 6, 7, WS_BYTES)
    OF = 64
    for c in range(16):
        a(f"buffer_load_dwordx4 v{vw}, s[{W}:{W+3}], s{sWg} offen lds")
        a(f"buffer_load_dwordx4 {vr(OF+8*c,4)}, v{vL16}, s[{WS}:{WS+3}], s{sOg} offen offset:{(c%2)*2048}")
        a(f"buffer_load_dwordx4 {vr(OF+8*c+4,4)}, v{vL16}, s[{WS}:{WS+3}], s{sOg} offen offset:{(c%2)*2048+1024}")
        if c < 15:
            a(f"s_add_u32 m0, m0, 4096")
            a(f"s_add_u32 s{sWg}, s{sWg}, 32768")
            if c % 2:
                a(f"s_add_u32 s{sOg}, s{sOg}, 4096")
    srd(a, OUT, 10, 11, 0x400000)
    a(f"v_lshrrev_b32 v6, 5, v0")
    a(f"v_bfe_u32 v8, v0, 2, 2")
    a(f"v_lshl_add_u32 v9, v6, 2, v8")
    a(f"v_lshlrev_b32 v9, 7, v9")
    a(f"v_lshl_add_u32 v9, v7, 4, v9")
    a(f"v_bfe_u32 v10, v0, 1, 1")
    a(f"v_lshl_add_u32 v9, v10, 3, v9")
    a(f"v_and_b32 v10, 1, v0")
    a(f"v_lshl_add_u32 v9, v10, 6, v9")
    a(f"v_lshrrev_b32 v8, 1, v8")
    a(f"v_lshl_add_u32 v{aw0}, v8, 5, v9")
    a(f"v_xor_b32 v{aw1}, 32, v{aw0}")
    a(f"v_and_b32 v8, 31, v0")
    a(f"v_lshlrev_b32 v8, 11, v8")
    a(f"v_lshl_add_u32 v{vO}, v6, 6, v8")
    a(f"s_lshl_b32 s{sT}, s{sRB}, 16")
    a(f"s_lshl_b32 s3, s{sBR}, 10")
    a(f"s_add_u32 s{sT}, s{sT}, s3")
    a(f"s_lshl_b32 s3, s{sNB}, 7")
    a(f"s_add_u32 s{sT}, s{sT}, s3")
    FW = [[12, 16], [20, 24]]
    ACC = [32, 48]

    def reads(h):
        s = h % 2
        return [f"ds_read_b64_tr_b16 {vr(FW[s][T]+2*half,2)}, v{aw1 if T else aw0} offset:{h*2048+half*1024}"
                for T in range(2) for half in range(2)]

    a("s_waitcnt vmcnt(36)")
    a("s_barrier")
    for r in reads(0):
        a(r)
    for h in range(32):
        a("s_waitcnt lgkmcnt(0)")
        R = []
        if h + 1 < 32:
            if (h + 1) % 8 == 0:
                a(f"s_waitcnt vmcnt({36 - 12*((h+1)//8)})")
                a("s_barrier")
            R = reads(h + 1)
        for T in range(2):
            d = vr(ACC[T], 16)
            a(f"{MFMA} {d}, {vr(FW[h%2][T],4)}, {vr(OF+4*h,4)}, {d if h else 0}")
            for _ in range(2):
                if R:
                    a(R.pop(0))
    for T in range(2):
        for i in range(8):
            a(f"v_cvt_pk_bf16_f32 v{OF+8*T+i}, v{ACC[T]+2*i}, v{ACC[T]+2*i+1}")
        for q in range(2):
            a(f"buffer_store_dwordx4 {vr(OF+8*T+4*q,4)}, v{vO}, s[{OUT}:{OUT+3}], s{sT} offen offset:{T*32+q*16}")
    a.label("proj_end")
    a("s_endpgm")
    return name, a, descriptor(name, 192), f"grid=(256,1,1) block=(256,1,1) lds=65536"


def build(opt):
    ref = open(f"cdna_kernels/{NAME}.s.ref").read().split("\n")
    hdr = [l for l in ref if l.startswith(";")]
    hdr = hdr[:[i for i, l in enumerate(hdr) if "Override launch" in l][0]]
    ks = [k(opt) for k in (k1, k2, k3)]
    out = "\n".join(hdr) + "\n"
    for name, a, desc, launch in ks:
        out += f"; @launch kernel={name} {launch}\n"
    for extra in range(opt.get("extra_launch", 0)):
        out += f"; @launch kernel=nop_kernel grid=(256,1,1) block=(64,1,1) lds=0\n"
    out += '.amdgcn_target "amdgcn-amd-amdhsa--gfx950"\n'
    for name, a, desc, launch in ks:
        out += a.text() + desc
        if opt.get("verbose"):
            print(name, "lines", len(a.L), "nops inserted:", [(r, t) for _, r, t in a.inserted], file=sys.stderr)
    if opt.get("extra_launch"):
        a = A()
        head(a, "nop_kernel")
        a("s_endpgm")
        out += a.text() + descriptor("nop_kernel", 8)
    return out


if __name__ == "__main__":
    opt = {"verbose": True}
    path = f"cdna_kernels/{NAME}.s"
    for arg in sys.argv[1:]:
        if "=" in arg:
            k, v = arg.split("=", 1)
            opt[k] = eval(v)
        else:
            path = arg
    open(path, "w").write(build(opt))
```

```python
import sys, struct, math
from asmlib import A

NAME = "concat_heads__linear_kernel_hedgehog__softmax_full_mha__prompt"
BR_STRIDE = 0x800000
Q_OFF, KV_OFF, O_OFF = 0, 0x200000, 0x600000
PART_OFF = 0x1000000
WS_BYTES = 0x1100000
LOG2E = 1.4426950408889634
M_OFF = 80.0


def f32(x):
    return "0x%08x" % struct.unpack("<I", struct.pack("<f", x))[0]


def vr(b, n):
    return f"v[{b}:{b+n-1}]" if n > 1 else f"v{b}"


def srd(a, d, lo, hi, size):
    a(f"s_mov_b32 s{d}, s{lo}")
    a(f"s_mov_b32 s{d+1}, s{hi}")
    a(f"s_mov_b32 s{d+2}, {hex(size)}")
    a(f"s_mov_b32 s{d+3}, 0x00020000")


def descriptor(name, vgpr, sgpr=102):
    acc = (vgpr + 3) // 4 * 4
    return f""".section .rodata,"a"
.p2align 6
.amdhsa_kernel {name}
  .amdhsa_next_free_vgpr {vgpr}
  .amdhsa_next_free_sgpr {sgpr}
  .amdhsa_accum_offset {acc}
  .amdhsa_group_segment_fixed_size 0
  .amdhsa_kernarg_size 80
  .amdhsa_user_sgpr_count 2
  .amdhsa_user_sgpr_kernarg_segment_ptr 1
  .amdhsa_system_sgpr_workgroup_id_x 1
.end_amdhsa_kernel
"""


def head(a, name):
    a.raw(".text")
    a.raw(f".globl {name}")
    a.raw(".p2align 8")
    a.raw(f".type {name},@function")
    a.label(name)


MFMA = "v_mfma_f32_32x32x16_bf16"
DIAG_OFF = 0x2000000
STAMP_NAMES = []


class Stamps:
    def __init__(self, a, opt, kidx, sW):
        self.a, self.on, self.k, self.n, self.sW = a, opt.get("stamp"), kidx, 0, sW
        self.names = []

    def __call__(self, name):
        if not self.on:
            return
        r = 60 + 2 * self.n
        self.n += 1
        self.names.append(name)
        assert self.n <= 16
        self.a(f"s_memrealtime s[{r}:{r+1}]" if self.on != 3 else f"s_memtime s[{r}:{r+1}]")
        self.a("s_waitcnt lgkmcnt(0)") if self.on == 2 else None

    def flush(self):
        if not self.on:
            return
        a = self.a
        a("s_waitcnt vmcnt(0) lgkmcnt(0)")
        self("end")
        a("s_load_dwordx2 s[96:97], s[0:1], 72")
        a("s_waitcnt lgkmcnt(0)")
        a(f"s_add_u32 s92, s96, {DIAG_OFF + self.k * 0x100000}")
        a("s_addc_u32 s93, s97, 0")
        a("s_mov_b32 s94, 0x100000")
        a("s_mov_b32 s95, 0x00020000")
        a("s_lshl_b32 s3, s2, 4")
        a(f"s_add_u32 s3, s3, s{self.sW}")
        a("s_lshl_b32 s3, s3, 6")
        a("v_mov_b32 v1, s3")
        for i in range(self.n):
            a(f"v_mov_b32 v2, s{60+2*i}")
            a(f"buffer_store_dword v2, v1, s[92:95], 0 offen offset:{4*i}")
        STAMP_NAMES.append(list(self.names))


def k1(opt):
    a = A()
    name = "qkv_kernel"
    head(a, name)
    sW, sBR, sMB, sNB, sXg, sWg, sXl, sWl, sT, sSC = 24, 25, 26, 27, 28, 29, 30, 31, 32, 33
    sQo, sKo, sVo = 34, 35, 36
    X, W, WS = 12, 16, 20
    a("s_cmp_ge_u32 s2, 256")
    a("s_cbranch_scc1 qkv_end")
    st_ = Stamps(a, opt, 0, sW)
    st_("start")
    a("s_load_dwordx4 s[4:7], s[0:1], 0")
    a("s_load_dwordx4 s[40:43], s[0:1], 32")
    a("s_load_dwordx2 s[8:9], s[0:1], 72")
    a(f"v_lshrrev_b32 v1, 6, v0")
    a(f"v_and_b32 v0, 63, v0")
    a(f"v_readfirstlane_b32 s{sW}, v1")
    a(f"s_and_b32 s3, s2, 7")
    a(f"s_lshr_b32 s{sT}, s2, 3")
    a(f"s_lshr_b32 s{sBR}, s3, 2")
    a(f"s_and_b32 s{sMB}, s3, 1")
    a(f"s_lshl_b32 s{sMB}, s{sMB}, 3")
    a(f"s_and_b32 s10, s{sT}, 7")
    a(f"s_add_u32 s{sMB}, s{sMB}, s10")
    a(f"s_bfe_u32 s{sNB}, s3, 0x10001")
    a(f"s_lshl_b32 s{sNB}, s{sNB}, 2")
    a(f"s_lshr_b32 s10, s{sT}, 3")
    a(f"s_add_u32 s{sNB}, s{sNB}, s10")
    vx0, vx1, vwq, vwk = 2, 3, 4, 5
    a(f"v_lshrrev_b32 v1, 3, v0")
    a(f"v_lshrrev_b32 v6, 4, v0")
    a(f"v_and_b32 v7, 7, v0")
    a(f"v_xor_b32 v8, v7, v6")
    a(f"v_lshlrev_b32 v8, 4, v8")
    a(f"v_lshl_add_u32 v{vx0}, v1, 10, v8")
    a(f"v_xor_b32 v{vx1}, 64, v{vx0}")
    a(f"v_and_b32 v8, 1, v6")
    a(f"v_lshlrev_b32 v8, 2, v8")
    a(f"v_xor_b32 v8, v7, v8")
    a(f"v_lshlrev_b32 v8, 4, v8")
    a(f"v_mul_u32_u24 v9, 3072, v1")
    a(f"v_add_u32 v{vwq}, v8, v9")
    a(f"v_xor_b32 v{vwk}, 32, v{vwq}")
    a(f"s_lshl_b32 s{sXg}, s{sMB}, 17")
    a(f"s_lshl_b32 s10, s{sW}, 15")
    a(f"s_add_u32 s{sXg}, s{sXg}, s10")
    a(f"s_mul_i32 s{sWg}, s{sW}, {16*3072}")
    a(f"s_lshl_b32 s10, s{sNB}, 7")
    a(f"s_add_u32 s{sWg}, s{sWg}, s10")
    a(f"s_lshl_b32 s{sXl}, s{sW}, 12")
    a(f"s_mul_i32 s{sWl}, s{sW}, 6144")
    a(f"s_add_u32 s{sWl}, s{sWl}, 65536")
    a("s_waitcnt lgkmcnt(0)")
    a(f"s_cmp_eq_u32 s{sBR}, 0")
    a(f"s_cselect_b32 s{X}, s4, s40")
    a(f"s_cselect_b32 s{X+1}, s5, s41")
    a(f"s_cselect_b32 s{W}, s6, s42")
    a(f"s_cselect_b32 s{W+1}, s7, s43")
    a(f"s_cselect_b32 s{sSC}, 1.0, {f32(0.25*LOG2E)}")
    a(f"s_mov_b32 s{X+2}, 0x200000")
    a(f"s_mov_b32 s{X+3}, 0x00020000")
    a(f"s_mov_b32 s{W+2}, 0x180000")
    a(f"s_mov_b32 s{W+3}, 0x00020000")

    def dma(stage):
        slot = stage % 4
        G = []
        for j in range(4):
            G.append(f"s_add_u32 m0, s{sXl}, {slot*16384 + j*1024}\n"
                     f"s_add_u32 s{sT}, s{sXg}, {j*8192 + stage*128}\n"
                     f"buffer_load_dwordx4 v{vx1 if j % 2 else vx0}, s[{X}:{X+3}], s{sT} offen lds")
        for g in range(3):
            for q in range(2):
                G.append(f"s_add_u32 m0, s{sWl}, {slot*24576 + (2*g+q)*1024}\n"
                         f"s_add_u32 s{sT}, s{sWg}, {(stage*64 + 8*q)*3072 + g*1024}\n"
                         f"buffer_load_dwordx4 v{vwk if g == 1 else vwq}, s[{W}:{W+3}], s{sT} offen lds")
        return G

    st_("kernarg")
    for st in range(4):
        for g in dma(st):
            a(g)
    st_("issued")
    a(f"s_lshl_b32 s10, s{sBR}, 23")
    a(f"s_add_u32 s8, s8, s10")
    a(f"s_addc_u32 s9, s9, 0")
    srd(a, WS, 8, 9, BR_STRIDE)
    ax = [10, 11, 12, 13]
    aw = [[14, 15], [16, 17], [18, 19]]
    vQ, vK, vV = 20, 21, 22
    a(f"s_and_b32 s10, s{sW}, 1")
    a(f"s_lshr_b32 s11, s{sW}, 1")
    a(f"v_and_b32 v1, 31, v0")
    a(f"v_lshrrev_b32 v6, 5, v0")
    a(f"v_bfe_u32 v7, v0, 1, 3")
    a(f"v_xor_b32 v7, v7, v6")
    a(f"s_lshl_b32 s3, s10, 13")
    a(f"v_lshl_add_u32 v8, v1, 7, s3")
    for ks in range(4):
        a(f"v_xor_b32 v9, {2*ks}, v7")
        a(f"v_lshl_add_u32 v{ax[ks]}, v9, 4, v8")
    a(f"v_bfe_u32 v7, v0, 4, 1")
    a(f"v_bfe_u32 v8, v0, 2, 2")
    a(f"v_lshl_add_u32 v9, v6, 3, v8")
    a(f"v_lshlrev_b32 v9, 7, v9")
    a(f"v_and_b32 v23, 3, v0")
    a(f"v_lshl_add_u32 v9, v23, 3, v9")
    a(f"v_add_u32 v9, 65536, v9")
    a(f"v_and_b32 v8, 2, v8")
    a(f"v_xor_b32 v8, v8, v7")
    a(f"s_lshl_b32 s3, s11, 1")
    a(f"v_xor_b32 v8, s3, v8")
    a(f"v_lshl_add_u32 v23, v8, 5, v9")
    a(f"v_add_u32 v{aw[2][0]}, 4096, v23")
    a(f"v_lshl_add_u32 v{aw[0][0]}, v7, 11, v23")
    a(f"v_xor_b32 v{aw[1][0]}, 32, v{aw[0][0]}")
    for t in range(3):
        a(f"v_add_u32 v{aw[t][1]}, 49152, v{aw[t][0]}")
    a(f"v_lshlrev_b32 v{vQ}, 4, v0")
    a(f"v_and_b32 v7, 0x33, v0")
    a(f"v_bfe_u32 v8, v0, 2, 1")
    a(f"v_lshl_or_b32 v7, v8, 3, v7")
    a(f"v_bfe_u32 v8, v0, 3, 1")
    a(f"v_lshl_or_b32 v7, v8, 2, v7")
    a(f"v_lshlrev_b32 v{vK}, 4, v7")
    a(f"v_and_b32 v7, 15, v0")
    a(f"v_lshlrev_b32 v7, 4, v7")
    a(f"v_lshl_add_u32 v7, v6, 9, v7")
    a(f"v_bfe_u32 v8, v0, 4, 1")
    a(f"v_lshl_add_u32 v{vV}, v8, 17, v7")
    a(f"s_lshl_b32 s{sMB}, s{sMB}, 2")
    a(f"s_lshl_b32 s10, s10, 1")
    a(f"s_add_u32 s{sMB}, s{sMB}, s10")
    a(f"s_lshl_b32 s{sNB}, s{sNB}, 2")
    a(f"s_add_u32 s{sNB}, s{sNB}, s3")
    a(f"s_lshl_b32 s{sQo}, s{sNB}, 16")
    a(f"s_lshl_b32 s10, s{sMB}, 10")
    a(f"s_add_u32 s{sQo}, s{sQo}, s10")
    a(f"s_lshl_b32 s{sKo}, s{sQo}, 1")
    a(f"s_add_u32 s{sKo}, s{sKo}, {KV_OFF}")

    FX = [[24, 28], [44, 48]]
    FW = [[32, 36, 40], [52, 56, 60]]
    ACC = [[64 + 16 * (3 * rbi + t) for t in range(3)] for rbi in range(2)]

    def reads(step):
        st, ks = divmod(step, 4)
        slot, s = st % 4, step % 2
        R = []
        for rbi in range(2):
            R.append(f"ds_read_b128 {vr(FX[s][rbi],4)}, v{ax[ks]} offset:{slot*16384 + rbi*4096}")
        for t in range(3):
            for half in range(2):
                R.append(f"ds_read_b64_tr_b16 {vr(FW[s][t]+2*half,2)}, v{aw[t][slot//2]} "
                         f"offset:{(slot%2)*24576 + ks*6144 + half*512}")
        return [R[0], R[2], R[3], R[4], R[5], R[1], R[6], R[7]]

    def mfmas(step):
        s = step % 2
        M = []
        for t, rbi in [(0, 0), (1, 0), (0, 1), (1, 1), (2, 0), (2, 1)]:
            d = vr(ACC[rbi][t], 16)
            c = d if step else "0"
            x, w = vr(FX[s][rbi], 4), vr(FW[s][t], 4)
            M.append(f"{MFMA} {d}, {w}, {x}, {c}" if t < 2 else f"{MFMA} {d}, {x}, {w}, {c}")
        return M

    vm = {0: 30, 1: 20, 2: 20, 3: 20, 4: 20, 5: 20, 6: 10, 7: 0}
    a(f"s_waitcnt vmcnt({vm[0]})")
    a("s_barrier")
    st_("stage0")
    for r in reads(0):
        a(r)
    pend = []
    for step in range(32):
        a("s_waitcnt lgkmcnt(0)")
        nxt = step + 1
        R = []
        if nxt < 32:
            if nxt % 4 == 0:
                st = nxt // 4
                a(f"s_waitcnt vmcnt({vm[st]})")
                a("s_barrier")
                st_(f"stage{st}")
                if st + 3 <= 7:
                    pend = dma(st + 3)
            R = reads(nxt)
        M = mfmas(step)
        for i, m in enumerate(M):
            a(m)
            for _ in range(2):
                if R:
                    a(R.pop(0))
            if i >= 2 and pend and (i < 5 or nxt % 4 == 0):
                a(pend.pop(0))
        if nxt % 4 == 3:
            assert not pend, (step, len(pend))
    st_("mainend")
    T = 24
    k = 0
    for t, rbi in [(0, 0), (1, 0), (0, 1), (1, 1)]:
        d = ACC[rbi][t]
        q, kk = T + 8 * (k % 4), T + 8 * (k % 4) + 4
        k += 1
        for i in range(8):
            a(f"v_mul_f32 v{d+i}, s{sSC}, v{d+i}")
        for i in range(4):
            a(f"v_cvt_pk_bf16_f32 v{q+i}, v{d+2*i}, v{d+2*i+1}")
        a(f"s_add_u32 s{sT}, s{sQo}, {t*65536 + rbi*1024}")
        a(f"buffer_store_dwordx4 {vr(q,4)}, v{vQ}, s[{WS}:{WS+3}], s{sT} offen")
        for i in range(4):
            a(f"v_cvt_pk_bf16_f32 v{kk+i}, v{d+8+2*i}, v{d+8+2*i+1}")
        a(f"s_add_u32 s{sT}, s{sKo}, {t*131072 + rbi*2048}")
        a(f"buffer_store_dwordx4 {vr(kk,4)}, v{vK}, s[{WS}:{WS+3}], s{sT} offen")
    for rbi in range(2):
        d = ACC[rbi][2]
        a(f"s_add_u32 s{sT}, s{sKo}, {rbi*2048 + 1024}")
        for tt in range(2):
            for i in range(4):
                a(f"v_cvt_pk_bf16_f32 v{d+8*tt+i}, v{d+8*tt+2*i}, v{d+8*tt+2*i+1}")
            a(f"buffer_store_dwordx4 {vr(d+8*tt,4)}, v{vV}, s[{WS}:{WS+3}], s{sT} offen offset:{tt*256}")
    st_("stored")
    st_.flush()
    a.label("qkv_end")
    a("s_endpgm")
    return name, a, descriptor(name, 160), f"grid=(256,1,1) block=(256,1,1) lds=163840"


def k2(opt):
    a = A()
    name = "attn_kernel"
    head(a, name)
    sW, sH, sQB, sRB, sT, sFB, sT2 = 24, 25, 26, 27, 28, 29, 30
    sMK = 32
    sC0 = 34
    KV, WS, PH, DB = 12, 16, 20, 36
    SCR = 131072
    vL16, vKp, vLa, vIdx, vL8 = 1, 2, 3, 4, 5
    vLim = vKp
    Q, C, S, O, Kf, Vf, PQ = 8, 12, [28, 44], 60, [76, 80], [84, 92], 100
    TMP = 108
    a("s_cmp_ge_u32 s2, 256")
    a("s_cbranch_scc1 attn_end")
    st_ = Stamps(a, opt, 1, sW)
    st_("start")
    a("s_load_dwordx2 s[4:5], s[0:1], 16")
    a("s_load_dwordx4 s[8:11], s[0:1], 64")
    a(f"v_lshrrev_b32 v1, 6, v0")
    a(f"v_and_b32 v0, 63, v0")
    a(f"v_readfirstlane_b32 s{sW}, v1")
    a(f"s_and_b32 s3, s2, 7")
    a(f"s_lshl_b32 s3, s3, 2")
    a(f"s_bfe_u32 s{sH}, s2, 0x20003")
    a(f"s_add_u32 s{sH}, s{sH}, s3")
    a(f"s_lshr_b32 s{sQB}, s2, 5")
    a(f"s_lshl_b32 s{sRB}, s{sQB}, 3")
    a(f"s_add_u32 s{sRB}, s{sRB}, s{sW}")
    a(f"s_mov_b32 s{sMK}, 0x0000ffff")
    a(f"s_mov_b32 s{sMK+1}, 0x0000ffff")
    a(f"s_mov_b32 s{sFB}, 0")
    a(f"v_lshlrev_b32 v{vL16}, 4, v0")
    a(f"v_lshlrev_b32 v{vL8}, 3, v0")
    a(f"v_and_b32 v7, 0x33, v0")
    a(f"v_bfe_u32 v6, v0, 2, 1")
    a(f"v_lshl_or_b32 v7, v6, 3, v7")
    a(f"v_bfe_u32 v6, v0, 3, 1")
    a(f"v_lshl_or_b32 v7, v6, 2, v7")
    a(f"v_lshlrev_b32 v{vKp}, 4, v7")
    a(f"v_and_b32 v6, 15, v0")
    a(f"v_lshlrev_b32 v6, 1, v6")
    a(f"v_lshrrev_b32 v7, 5, v0")
    a(f"v_lshl_add_u32 v6, v7, 7, v6")
    for i in range(16):
        a(f"v_mov_b32 v{Vf[0]+i}, 0x3f803f80")
    a("s_waitcnt lgkmcnt(0)")
    srd(a, PH, 4, 5, 16384)
    srd(a, WS, 10, 11, WS_BYTES)
    srd(a, DB, 8, 9, 256)
    a(f"s_lshl_b32 s3, s{sH}, 17")
    a(f"s_add_u32 s3, s3, {BR_STRIDE + KV_OFF}")
    a(f"s_add_u32 s{KV}, s10, s3")
    a(f"s_addc_u32 s{KV+1}, s11, 0")
    a(f"s_mov_b32 s{KV+2}, 131072")
    a(f"s_mov_b32 s{KV+3}, 0x00020000")
    WPL = TMP
    WP = 116
    KA, QA = Kf[0], Kf[1]
    VA = Vf[0]
    a(f"s_lshl_b32 s{sT}, s{sH}, 9")
    for j in range(8):
        d = 8 * (j // 4) + j % 4
        a(f"buffer_load_ushort v{WPL+j}, v6, s[{PH}:{PH+3}], s{sT} offen offset:{d*32}")
    a(f"s_lshl_b32 s3, s{sH}, 6")
    a(f"s_add_u32 s3, s3, s{sRB}")
    a(f"s_lshl_b32 s{sT}, s3, 11")
    a(f"s_add_u32 s{sT}, s{sT}, {KV_OFF}")
    a(f"buffer_load_dwordx4 {vr(KA,4)}, v{vKp}, s[{WS}:{WS+3}], s{sT} offen")
    a(f"s_mov_b64 exec, s[{sMK}:{sMK+1}]")
    a(f"buffer_load_dwordx4 {vr(VA,4)}, v{vL16}, s[{WS}:{WS+3}], s{sT} offen offset:1024")
    a(f"buffer_load_dwordx4 {vr(VA+4,4)}, v{vL16}, s[{WS}:{WS+3}], s{sT} offen offset:1280")
    a(f"s_mov_b64 exec, -1")
    a(f"s_lshl_b32 s{sT}, s3, 10")
    a(f"buffer_load_dwordx4 {vr(QA,4)}, v{vL16}, s[{WS}:{WS+3}], s{sT} offen")
    a(f"s_add_u32 s{sT}, s{sT}, {BR_STRIDE}")
    a(f"buffer_load_dwordx4 {vr(Q,4)}, v{vL16}, s[{WS}:{WS+3}], s{sT} offen")
    a(f"s_lshl_b32 m0, s{sW}, 10")
    for c in range(16):
        a(f"buffer_load_dwordx4 v{vL16}, s[{KV}:{KV+3}], m0 offen lds")
        if c < 15:
            a(f"s_add_u32 m0, m0, 8192")
    st_("issued")
    a(f"v_mov_b32 v{vIdx}, 0xdddddddd")
    a(f"v_mov_b32 v{vLim}, 0x7e800000")
    a(f"v_mov_b32 v{vLa}, v{vL16}")
    ID = O
    a(f"v_and_b32 v6, 31, v0")
    a(f"v_lshlrev_b32 v7, 2, v7")
    a(f"v_sub_u32 v6, v6, v7")
    a(f"v_mov_b32 v7, 0x3f80")
    for t in range(2):
        for rr, base in enumerate([0, 2, 8, 10]):
            r = ID + 4 * t + rr
            a(f"v_subrev_u32 v{r}, {16*t+base}, v6")
            a(f"v_cmp_gt_u32 s[{sC0}:{sC0+1}], 2, v{r}")
            a(f"v_lshlrev_b32 v{r}, 4, v{r}")
            a(f"v_lshlrev_b32 v{r}, v{r}, v7")
            a(f"v_cndmask_b32 v{r}, 0, v{r}, s[{sC0}:{sC0+1}]")
    vC = 7
    a(f"v_mov_b32 v{vC}, {f32(LOG2E)}")
    a("s_waitcnt vmcnt(21)")
    for i in range(4):
        a(f"v_lshl_or_b32 v{WP+i}, v{WPL+2*i+1}, 16, v{WPL+2*i}")

    def phi(src, T, E, out):
        x, y, z = TMP, TMP + 1, TMP + 2
        a(f"{MFMA} {vr(T,16)}, {vr(WP,4)}, {vr(src,4)}, 0")
        if opt.get("round_p"):
            for i in range(4):
                a(f"v_cvt_pk_bf16_f32 v{T+8+i}, v{T+2*i}, v{T+2*i+1}")
            for i in range(4):
                a(f"v_lshlrev_b32 v{T+2*i}, 16, v{T+8+i}")
                a(f"v_and_b32 v{T+2*i+1}, 0xffff0000, v{T+8+i}")
        a(f"v_max3_f32 v{x}, v{T}, v{T+1}, v{T+2}")
        a(f"v_max3_f32 v{y}, -v{T}, -v{T+1}, -v{T+2}")
        a(f"v_max3_f32 v{x}, v{x}, v{T+3}, v{T+4}")
        a(f"v_max3_f32 v{y}, v{y}, -v{T+3}, -v{T+4}")
        a(f"v_max3_f32 v{x}, v{x}, v{T+5}, v{T+6}")
        a(f"v_max3_f32 v{y}, v{y}, -v{T+5}, -v{T+6}")
        a(f"v_max_f32 v{x}, v{x}, v{T+7}")
        a(f"v_max_f32_e64 v{y}, v{y}, -v{T+7}")
        a(f"v_permlane32_swap_b32 v{x}, v{y}")
        a(f"v_max_f32 v{x}, v{x}, v{y}")
        a(f"v_mul_f32 v{x}, v{vC}, v{x}")
        a(f"v_mov_b32 v{y}, v{x}")
        a(f"v_permlane32_swap_b32 v{x}, v{y}")
        for i in range(8):
            a(f"v_fma_f32 v{E+i}, v{T+i}, v{vC}, -v{x}")
            a(f"v_fma_f32 v{E+8+i}, -v{T+i}, v{vC}, -v{y}")
        for i in range(16):
            a(f"v_exp_f32 v{E+i}, v{E+i}")
        a(f"v_add_f32 v{T}, v{E}, v{E+1}")
        a(f"v_add_f32 v{T+1}, v{E+2}, v{E+3}")
        a(f"v_add_f32 v{T+2}, v{E+4}, v{E+5}")
        a(f"v_add_f32 v{T+3}, v{E+6}, v{E+7}")
        a(f"v_add_f32 v{T+4}, v{E+8}, v{E+9}")
        a(f"v_add_f32 v{T+5}, v{E+10}, v{E+11}")
        a(f"v_add_f32 v{T+6}, v{E+12}, v{E+13}")
        a(f"v_add_f32 v{T+7}, v{E+14}, v{E+15}")
        a(f"v_add_f32 v{T}, v{T}, v{T+1}")
        a(f"v_add_f32 v{T+2}, v{T+2}, v{T+3}")
        a(f"v_add_f32 v{T+4}, v{T+4}, v{T+5}")
        a(f"v_add_f32 v{T+6}, v{T+6}, v{T+7}")
        a(f"v_add_f32 v{x}, v{T}, v{T+2}")
        a(f"v_add_f32 v{y}, v{T+4}, v{T+6}")
        a(f"v_permlane32_swap_b32 v{x}, v{y}")
        a(f"v_add_f32 v{x}, v{x}, v{y}")
        a(f"v_rcp_f32 v{x}, v{x}")
        a(f"v_mov_b32 v{y}, v{x}")
        a(f"v_permlane32_swap_b32 v{x}, v{y}")
        for i in range(8):
            a(f"v_mul_f32 v{E+i}, v{E+i}, v{x}")
            a(f"v_mul_f32 v{E+8+i}, v{E+8+i}, v{y}")
        for i in range(8):
            a(f"v_cvt_pk_bf16_f32 v{out+i}, v{E+2*i}, v{E+2*i+1}")

    a("s_waitcnt vmcnt(20)")
    st_("kA")
    PK = 120
    phi(KA, S[0], S[1], PK)
    a(f"{MFMA} {vr(C,16)}, {vr(PK,4)}, {vr(ID,4)}, 0")
    a(f"{MFMA} {vr(C,16)}, {vr(PK+4,4)}, {vr(ID+4,4)}, {vr(C,16)}")
    a("s_waitcnt vmcnt(17)")
    phi(QA, S[0], S[1], PQ)
    for i in range(8):
        a(f"v_cvt_pk_bf16_f32 v{PK+i}, v{C+2*i}, v{C+2*i+1}")
    a(f"{MFMA} {vr(C,16)}, {vr(PK,4)}, {vr(VA,4)}, 0")
    a(f"{MFMA} {vr(C,16)}, {vr(PK+4,4)}, {vr(VA+4,4)}, {vr(C,16)}")
    a(f"s_lshl_b32 s3, s{sW}, 12")
    a(f"s_add_u32 s3, s3, {SCR}")
    a(f"v_add_u32 v6, s3, v{vL8}")
    for p in range(8):
        a(f"ds_write_b64 v6, {vr(C+2*p,2)} offset:{p*512}")
    SEG1 = opt.get("seg1", 16)
    rounds = (SEG1 + 2 + 3) // 4
    st_("Adone")
    a(f"s_waitcnt vmcnt({16-rounds}) lgkmcnt(0)")
    a("s_barrier")
    st_("bar1")
    a(f"s_lshl_b32 s3, s{sW}, 9")
    a(f"s_add_u32 s3, s3, {SCR}")
    a(f"v_add_u32 v6, s3, v{vL8}")
    for p in range(8):
        a(f"ds_read_b64 {vr(S[1]+2*p,2)}, v6 offset:{p*4096}")
    a(f"ds_read_b128 {vr(Kf[0],4)}, v{vLa}")
    a(f"s_lshl_b32 s{sT2}, s{sH}, 15")
    a(f"s_lshl_b32 s3, s{sW}, 9")
    a(f"s_add_u32 s{sT2}, s{sT2}, s3")
    a(f"s_add_u32 s{sT2}, s{sT2}, {PART_OFF}")
    a(f"s_lshl_b32 s3, s{sQB}, 12")
    a(f"s_add_u32 s{sT}, s{sT2}, s3")
    a("s_waitcnt lgkmcnt(0)")
    a(f"{MFMA} {vr(S[0],16)}, {vr(Kf[0],4)}, {vr(Q,4)}, 0")
    s1 = S[1]
    for step in (8, 4, 2):
        for i in range(step):
            a(f"v_add_f32 v{s1+i}, v{s1+i}, v{s1+i+step}")
    a(f"buffer_store_dwordx2 {vr(s1,2)}, v{vL8}, s[{WS}:{WS+3}], s{sT} offen sc1")
    x, y = TMP, TMP + 1
    s0 = S[0]
    a(f"v_max3_f32 v{x}, v{s0}, v{s0+1}, v{s0+2}")
    a(f"v_max3_f32 v{y}, v{s0+3}, v{s0+4}, v{s0+5}")
    for i in range(2):
        a(f"v_max3_f32 v{x}, v{x}, v{s0+6+4*i}, v{s0+7+4*i}")
        a(f"v_max3_f32 v{y}, v{y}, v{s0+8+4*i}, v{s0+9+4*i}")
    a(f"v_max3_f32 v{x}, v{x}, v{s0+14}, v{s0+15}")
    a(f"v_max_f32 v{x}, v{x}, v{y}")
    a(f"v_add_f32 v{x}, {f32(M_OFF)}, v{x}")
    a.label("attn_restart")
    a(f"v_mov_b32 v{y}, v{x}")
    a(f"v_permlane32_swap_b32 v{x}, v{y}")
    a(f"v_max_f32 v{x}, v{x}, v{y}")
    for i in range(16):
        a(f"v_sub_f32 v{C+i}, 0, v{x}")
    a(f"ds_read_b128 {vr(Kf[0],4)}, v{vLa}")
    a(f"ds_read_b128 {vr(Kf[1],4)}, v{vLa} offset:2048")
    a(f"s_mov_b64 exec, s[{sMK}:{sMK+1}]")
    a(f"ds_read_b128 {vr(Vf[0],4)}, v{vLa} offset:1024")
    a(f"ds_read_b128 {vr(Vf[0]+4,4)}, v{vLa} offset:1280")
    a(f"s_mov_b64 exec, -1")
    for i in range(16):
        a(f"v_mov_b32 v{O+i}, 0")
    a("s_waitcnt lgkmcnt(3)")
    a(f"{MFMA} {vr(S[0],16)}, {vr(Kf[0],4)}, {vr(Q,4)}, {vr(C,16)}")
    a.nop(10)

    SM = "v_smfmac_f32_32x32x32_bf16"
    base = [0]

    def lds_off(t):
        return (t - base[0]) * 2048

    def tile(t):
        b, nb = t % 2, 1 - t % 2
        e = [f"v_exp_f32 v{S[b]+i}, v{S[b]+i}" for i in range(16)]
        a("s_waitcnt lgkmcnt(0)")
        a(e[0]); a(e[1])
        if t > 0:
            a(f"{SM} {vr(O,16)}, {vr(Vf[nb]+4,4)}, {vr(S[nb]+8,8)}, v{vIdx}")
        if t + 1 < 64:
            a(f"s_mov_b64 exec, s[{sMK}:{sMK+1}]")
            a(f"ds_read_b128 {vr(Vf[nb],4)}, v{vLa} offset:{lds_off(t+1)+1024}")
            a(f"ds_read_b128 {vr(Vf[nb]+4,4)}, v{vLa} offset:{lds_off(t+1)+1280}")
            a(f"s_mov_b64 exec, -1")
        for i in range(2, 6):
            a(e[i])
        if t + 1 < 64:
            a(f"{MFMA} {vr(S[nb],16)}, {vr(Kf[nb],4)}, {vr(Q,4)}, {vr(C,16)}")
        if t + 2 == 32:
            a(f"v_add_u32 v{vLa}, 65536, v{vLa}")
            base[0] = 32
        if t + 2 < 64:
            a(f"ds_read_b128 {vr(Kf[b],4)}, v{vLa} offset:{lds_off(t+2)}")
        for i in range(6, 11):
            a(e[i])
        a(f"{SM} {vr(O,16)}, {vr(Vf[b],4)}, {vr(S[b],8)}, v{vIdx}")
        for i in range(11, 16):
            a(e[i])

    def job_barrier2():
        a(f"s_cmp_lg_u32 s{sFB}, 0")
        a("s_cbranch_scc1 attn_j2_skip")
        a("s_waitcnt vmcnt(0)")
        a("s_barrier")
        a(f"s_cmp_lg_u32 s{sW}, 0")
        a("s_cbranch_scc1 attn_j2_skip")
        a(f"s_lshl_b32 s3, s{sH}, 2")
        a(f"v_mov_b32 v{TMP}, 1")
        a(f"v_mov_b32 v{TMP+1}, s3")
        a("s_mov_b64 exec, 1")
        a(f"buffer_atomic_add v{TMP}, v{TMP+1}, s[{DB}:{DB+3}], 0 offen sc1")
        a("s_mov_b64 exec, -1")
        a.label("attn_j2_skip")

    def job_gather():
        a(f"s_cmp_lg_u32 s{sFB}, 0")
        a("s_cbranch_scc1 attn_j3_skip")
        a(f"s_lshl_b32 s3, s{sH}, 2")
        a(f"v_mov_b32 v{TMP+1}, s3")
        a.label("attn_poll")
        a(f"buffer_load_dword v{TMP}, v{TMP+1}, s[{DB}:{DB+3}], 0 offen sc1")
        a("s_waitcnt vmcnt(0)")
        a(f"v_readfirstlane_b32 s3, v{TMP}")
        a("s_cmp_ge_u32 s3, 8")
        a("s_cbranch_scc1 attn_polled")
        a("s_branch attn_poll")
        a.label("attn_polled")
        for qb in range(8):
            a(f"s_add_u32 s3, s{sT2}, {qb*4096}")
            a(f"buffer_load_dwordx2 {vr(TMP+2*qb,2)}, v{vL8}, s[{WS}:{WS+3}], s3 offen sc1")
        a(f"s_lshr_b32 s3, s{sW}, 2")
        a(f"s_lshl_b32 s3, s3, 10")
        a(f"s_and_b32 s{sT}, s{sW}, 3")
        a(f"s_lshl_b32 s{sT}, s{sT}, 2")
        a(f"s_add_u32 s3, s3, s{sT}")
        a(f"s_add_u32 s3, s3, {SCR}")
        a(f"v_add_u32 v6, s3, v{vL16}")
        a("s_waitcnt vmcnt(0)")
        for step in (8, 4, 2):
            for i in range(step):
                a(f"v_add_f32 v{TMP+i}, v{TMP+i}, v{TMP+i+step}")
        a(f"v_cvt_pk_bf16_f32 v{TMP}, v{TMP}, v{TMP+1}")
        a(f"ds_write_b32 v6, v{TMP}")
        a.label("attn_j3_skip")

    def job_oa():
        a(f"s_cmp_lg_u32 s{sFB}, 0")
        a("s_cbranch_scc1 attn_j4_skip")
        a("s_waitcnt lgkmcnt(0)")
        a("s_barrier")
        a(f"v_add_u32 v6, {SCR}, v{vL16}")
        a(f"ds_read_b128 {vr(TMP,4)}, v6")
        a(f"ds_read_b128 {vr(TMP+4,4)}, v6 offset:1024")
        a(f"s_lshl_b32 s3, s{sRB}, 5")
        a(f"s_add_u32 s3, s3, s{sH}")
        a(f"s_lshl_b32 s3, s3, 10")
        a(f"s_add_u32 s3, s3, {O_OFF}")
        a("s_waitcnt lgkmcnt(0)")
        ND = 116
        a(f"{MFMA} {vr(ND,16)}, {vr(TMP,4)}, {vr(PQ,4)}, 0")
        a(f"{MFMA} {vr(ND,16)}, {vr(TMP+4,4)}, {vr(PQ+4,4)}, {vr(ND,16)}")
        a(f"v_add_f32 v{ND+8}, {f32(1e-6)}, v{ND+8}")
        a(f"v_rcp_f32 v{ND+8}, v{ND+8}")
        for i in range(8):
            a(f"v_mul_f32 v{ND+i}, v{ND+i}, v{ND+8}")
        for i in range(4):
            a(f"v_cvt_pk_bf16_f32 v{TMP+i}, v{ND+2*i}, v{ND+2*i+1}")
        a(f"buffer_store_dwordx4 {vr(TMP,4)}, v{vL16}, s[{WS}:{WS+3}], s3 offen")
        a.label("attn_j4_skip")

    plan = opt.get("plan") or {0: ("p3",), 10: ("p2",), 14: ("p1",), SEG1: ("b2", "p3"), 36: ("g",), 40: ("p2",),
                               48: ("p1",), 52: ("oa", "p3"), 60: ("p2",), 62: ("p1",)}
    for t in range(64):
        if t in (0, 8, 16, 24, 32, 40, 48, 56):
            st_(f"t{t}")
        for act in plan.get(t, ()):
            if act[0] == "p":
                a(f"s_setprio {act[1]}")
            elif act == "b2":
                job_barrier2()
            elif act == "g":
                job_gather()
            elif act == "oa":
                job_oa()
        tile(t)
    a(f"s_lshl_b32 s3, s{sRB}, 5")
    a(f"s_add_u32 s3, s3, s{sH}")
    a(f"{SM} {vr(O,16)}, {vr(Vf[1]+4,4)}, {vr(S[1]+8,8)}, v{vIdx}")
    a(f"s_lshl_b32 s3, s3, 10")
    a(f"s_add_u32 s3, s3, {BR_STRIDE + O_OFF}")
    a(f"s_cmp_lg_u32 s{sFB}, 0")
    a("s_cbranch_scc1 attn_final")
    a(f"v_add_f32_e64 v{x}, abs(v{O}), abs(v{O+1})")
    a(f"v_add_f32_e64 v{y}, abs(v{O+2}), abs(v{O+3})")
    a(f"v_add_f32_e64 v{x}, v{x}, abs(v{O+4})")
    a(f"v_add_f32_e64 v{y}, v{y}, abs(v{O+5})")
    a(f"v_add_f32_e64 v{x}, v{x}, abs(v{O+6})")
    a(f"v_add_f32_e64 v{y}, v{y}, abs(v{O+7})")
    a(f"v_add_f32 v{x}, v{x}, v{O+8}")
    a(f"v_add_f32 v{x}, v{x}, v{y}")
    a(f"v_cmp_nle_f32 vcc, v{x}, v{vLim}")
    a("s_cbranch_vccz attn_final")
    a(f"s_mov_b32 s{sFB}, 1")
    a(f"v_mov_b32 v{vLa}, v{vL16}")
    a(f"v_mov_b32 v{x}, 0xff800000")
    a(f"s_mov_b32 s3, 64")
    a.label("attn_maxloop")
    a(f"ds_read_b128 {vr(Kf[0],4)}, v{vLa}")
    a(f"v_add_u32 v{vLa}, 2048, v{vLa}")
    a("s_waitcnt lgkmcnt(0)")
    a(f"{MFMA} {vr(S[0],16)}, {vr(Kf[0],4)}, {vr(Q,4)}, 0")
    for i in range(8):
        a(f"v_max3_f32 v{x}, v{x}, v{s0+2*i}, v{s0+2*i+1}")
    a("s_sub_u32 s3, s3, 1")
    a("s_cmp_lg_u32 s3, 0")
    a("s_cbranch_scc1 attn_maxloop")
    a(f"v_mov_b32 v{vLa}, v{vL16}")
    a("s_branch attn_restart")
    a.label("attn_final")
    st_("t64")
    a.nop(12)
    a(f"v_rcp_f32 v{x}, v{O+8}")
    for i in range(8):
        a(f"v_mul_f32 v{O+i}, v{O+i}, v{x}")
    for i in range(4):
        a(f"v_cvt_pk_bf16_f32 v{TMP+4+i}, v{O+2*i}, v{O+2*i+1}")
    a(f"buffer_store_dwordx4 {vr(TMP+4,4)}, v{vL16}, s[{WS}:{WS+3}], s3 offen")
    st_.flush()
    a.label("attn_end")
    a("s_endpgm")
    return name, a, descriptor(name, 136), f"grid=(256,1,1) block=(512,1,1) lds=163840"


def k3(opt):
    a = A()
    name = "proj_kernel"
    head(a, name)
    sW, sBR, sRB, sNB, sT, sOg, sWg = 24, 25, 26, 27, 28, 29, 30
    W, WS, OUT = 12, 16, 20
    a("s_cmp_ge_u32 s2, 256")
    a("s_cbranch_scc1 proj_end")
    st_ = Stamps(a, opt, 2, sW)
    st_("start")
    a("s_load_dwordx2 s[4:5], s[0:1], 24")
    a("s_load_dwordx4 s[8:11], s[0:1], 48")
    a("s_load_dwordx2 s[6:7], s[0:1], 72")
    a(f"v_lshrrev_b32 v1, 6, v0")
    a(f"v_and_b32 v0, 63, v0")
    a(f"v_readfirstlane_b32 s{sW}, v1")
    a(f"s_bfe_u32 s{sBR}, s2, 0x10002")
    a(f"s_and_b32 s{sRB}, s2, 3")
    a(f"s_lshl_b32 s{sRB}, s{sRB}, 2")
    a(f"s_bfe_u32 s3, s2, 0x20003")
    a(f"s_add_u32 s{sRB}, s{sRB}, s3")
    a(f"s_lshl_b32 s{sRB}, s{sRB}, 2")
    a(f"s_add_u32 s{sRB}, s{sRB}, s{sW}")
    a(f"s_lshr_b32 s{sNB}, s2, 5")
    vL16, vw, aw0, aw1, vO = 1, 2, 3, 4, 5
    a(f"v_lshlrev_b32 v{vL16}, 4, v0")
    a(f"v_lshrrev_b32 v6, 3, v0")
    a(f"v_bfe_u32 v7, v0, 4, 1")
    a(f"v_lshlrev_b32 v8, 1, v7")
    a(f"v_and_b32 v9, 7, v0")
    a(f"v_xor_b32 v8, v8, v9")
    a(f"v_lshlrev_b32 v8, 4, v8")
    a(f"v_lshl_add_u32 v{vw}, v6, 10, v8")
    a(f"s_lshl_b32 s{sOg}, s{sRB}, 15")
    a(f"s_lshl_b32 s3, s{sBR}, 23")
    a(f"s_add_u32 s{sOg}, s{sOg}, s3")
    a(f"s_add_u32 s{sOg}, s{sOg}, {O_OFF}")
    a(f"s_lshl_b32 s{sWg}, s{sW}, 13")
    a(f"s_lshl_b32 s3, s{sNB}, 7")
    a(f"s_add_u32 s{sWg}, s{sWg}, s3")
    a(f"s_lshl_b32 m0, s{sW}, 10")
    a("s_waitcnt lgkmcnt(0)")
    a(f"s_cmp_eq_u32 s{sBR}, 0")
    a(f"s_cselect_b32 s{W}, s4, s8")
    a(f"s_cselect_b32 s{W+1}, s5, s9")
    a(f"s_mov_b32 s{W+2}, 0x80000")
    a(f"s_mov_b32 s{W+3}, 0x00020000")
    srd(a, WS, 6, 7, WS_BYTES)
    OF = 64
    for c in range(16):
        a(f"buffer_load_dwordx4 v{vw}, s[{W}:{W+3}], s{sWg} offen lds")
        a(f"buffer_load_dwordx4 {vr(OF+8*c,4)}, v{vL16}, s[{WS}:{WS+3}], s{sOg} offen offset:{(c%2)*2048}")
        a(f"buffer_load_dwordx4 {vr(OF+8*c+4,4)}, v{vL16}, s[{WS}:{WS+3}], s{sOg} offen offset:{(c%2)*2048+1024}")
        if c < 15:
            a(f"s_add_u32 m0, m0, 4096")
            a(f"s_add_u32 s{sWg}, s{sWg}, 32768")
            if c % 2:
                a(f"s_add_u32 s{sOg}, s{sOg}, 4096")
    st_("issued")
    srd(a, OUT, 10, 11, 0x400000)
    a(f"v_lshrrev_b32 v6, 5, v0")
    a(f"v_bfe_u32 v8, v0, 2, 2")
    a(f"v_lshl_add_u32 v9, v6, 2, v8")
    a(f"v_lshlrev_b32 v9, 7, v9")
    a(f"v_lshl_add_u32 v9, v7, 4, v9")
    a(f"v_bfe_u32 v10, v0, 1, 1")
    a(f"v_lshl_add_u32 v9, v10, 3, v9")
    a(f"v_and_b32 v10, 1, v0")
    a(f"v_lshl_add_u32 v9, v10, 6, v9")
    a(f"v_lshrrev_b32 v8, 1, v8")
    a(f"v_lshl_add_u32 v{aw0}, v8, 5, v9")
    a(f"v_xor_b32 v{aw1}, 32, v{aw0}")
    a(f"v_and_b32 v8, 31, v0")
    a(f"v_lshlrev_b32 v8, 11, v8")
    a(f"v_lshl_add_u32 v{vO}, v6, 6, v8")
    a(f"s_lshl_b32 s{sT}, s{sRB}, 16")
    a(f"s_lshl_b32 s3, s{sBR}, 10")
    a(f"s_add_u32 s{sT}, s{sT}, s3")
    a(f"s_lshl_b32 s3, s{sNB}, 7")
    a(f"s_add_u32 s{sT}, s{sT}, s3")
    FW = [[12, 16], [20, 24]]
    ACC = [32, 48]

    def reads(h):
        s = h % 2
        return [f"ds_read_b64_tr_b16 {vr(FW[s][T]+2*half,2)}, v{aw1 if T else aw0} offset:{h*2048+half*1024}"
                for T in range(2) for half in range(2)]

    a("s_waitcnt vmcnt(36)")
    a("s_barrier")
    st_("ph0")
    for r in reads(0):
        a(r)
    for h in range(32):
        a("s_waitcnt lgkmcnt(0)")
        R = []
        if h + 1 < 32:
            if (h + 1) % 8 == 0:
                a(f"s_waitcnt vmcnt({36 - 12*((h+1)//8)})")
                a("s_barrier")
                st_(f"ph{(h+1)//8}")
            R = reads(h + 1)
        for T in range(2):
            d = vr(ACC[T], 16)
            a(f"{MFMA} {d}, {vr(FW[h%2][T],4)}, {vr(OF+4*h,4)}, {d if h else 0}")
            for _ in range(2):
                if R:
                    a(R.pop(0))
    st_("mainend")
    for T in range(2):
        for i in range(8):
            a(f"v_cvt_pk_bf16_f32 v{OF+8*T+i}, v{ACC[T]+2*i}, v{ACC[T]+2*i+1}")
        for q in range(2):
            a(f"buffer_store_dwordx4 {vr(OF+8*T+4*q,4)}, v{vO}, s[{OUT}:{OUT+3}], s{sT} offen offset:{T*32+q*16}")
    st_("stored")
    st_.flush()
    a.label("proj_end")
    a("s_endpgm")
    return name, a, descriptor(name, 192), f"grid=(256,1,1) block=(256,1,1) lds=65536"


def build(opt):
    ref = open(f"cdna_kernels/{NAME}.s.ref").read().split("\n")
    hdr = [l for l in ref if l.startswith(";")]
    hdr = hdr[:[i for i, l in enumerate(hdr) if "Override launch" in l][0]]
    ks = [k(opt) for k in (k1, k2, k3)]
    out = "\n".join(hdr) + "\n"
    for extra in range(opt.get("pre_launch", 0)):
        out += f"; @launch kernel=nop_kernel grid=(256,1,1) block=(64,1,1) lds=0\n"
    for name, a, desc, launch in ks:
        out += f"; @launch kernel={name} {launch}\n"
    if opt.get("diag"):
        out += f"; @launch kernel=diag_kernel grid=(1,1,1) block=(64,1,1) lds=0\n"
    for extra in range(opt.get("extra_launch", 0)):
        out += f"; @launch kernel=nop_kernel grid=(256,1,1) block=(64,1,1) lds=0\n"
    out += '.amdgcn_target "amdgcn-amd-amdhsa--gfx950"\n'
    for name, a, desc, launch in ks:
        out += a.text() + desc
        if opt.get("verbose"):
            print(name, "lines", len(a.L), "nops inserted:", [(r, t) for _, r, t in a.inserted], file=sys.stderr)
    if opt.get("diag"):
        kA, iA, kB, iB, mult = opt["diag"]
        a = A()
        head(a, "diag_kernel")
        a("s_cmp_ge_u32 s2, 1")
        a("s_cbranch_scc1 diag_end")
        a("s_load_dwordx2 s[4:5], s[0:1], 72")
        a("s_waitcnt lgkmcnt(0)")
        a(f"s_add_u32 s6, s4, {DIAG_OFF + kA*0x100000 + 4*iA}")
        a("s_addc_u32 s7, s5, 0")
        a(f"s_add_u32 s8, s4, {DIAG_OFF + kB*0x100000 + 4*iB}")
        a("s_addc_u32 s9, s5, 0")
        a("s_load_dword s10, s[6:7], 0")
        a("s_load_dword s11, s[8:9], 0")
        a("s_memrealtime s[12:13]")
        a("s_waitcnt lgkmcnt(0)")
        a("s_sub_u32 s10, s11, s10")
        a("s_min_u32 s10, s10, 20000")
        a(f"s_mul_i32 s10, s10, {mult}")
        a.label("diag_loop")
        a("s_memrealtime s[14:15]")
        a("s_waitcnt lgkmcnt(0)")
        a("s_sub_u32 s14, s14, s12")
        a("s_cmp_lt_u32 s14, s10")
        a("s_cbranch_scc1 diag_loop")
        a.label("diag_end")
        a("s_endpgm")
        out += a.text() + descriptor("diag_kernel", 8)
    if opt.get("extra_launch") or opt.get("pre_launch"):
        a = A()
        head(a, "nop_kernel")
        a("s_endpgm")
        out += a.text() + descriptor("nop_kernel", 8)
    return out


if __name__ == "__main__":
    opt = {"verbose": True}
    path = f"cdna_kernels/{NAME}.s"
    for arg in sys.argv[1:]:
        if "=" in arg:
            k, v = arg.split("=", 1)
            opt[k] = eval(v)
        else:
            path = arg
    open(path, "w").write(build(opt))
    if opt.get("stamp"):
        open(path + ".names", "w").write(repr(STAMP_NAMES))
```

```python
import sys, struct, math
from asmlib import A

NAME = "concat_heads__linear_kernel_hedgehog__softmax_full_mha__prompt"
BR_STRIDE = 0x800000
Q_OFF, KV_OFF, O_OFF = 0, 0x200000, 0x600000
PART_OFF = 0x1000000
WS_BYTES = 0x1100000
LOG2E = 1.4426950408889634
M_OFF = 80.0


def f32(x):
    return "0x%08x" % struct.unpack("<I", struct.pack("<f", x))[0]


def vr(b, n):
    return f"v[{b}:{b+n-1}]" if n > 1 else f"v{b}"


def srd(a, d, lo, hi, size):
    a(f"s_mov_b32 s{d}, s{lo}")
    a(f"s_mov_b32 s{d+1}, s{hi}")
    a(f"s_mov_b32 s{d+2}, {hex(size)}")
    a(f"s_mov_b32 s{d+3}, 0x00020000")


def descriptor(name, vgpr, sgpr=102):
    acc = (vgpr + 3) // 4 * 4
    return f""".section .rodata,"a"
.p2align 6
.amdhsa_kernel {name}
  .amdhsa_next_free_vgpr {vgpr}
  .amdhsa_next_free_sgpr {sgpr}
  .amdhsa_accum_offset {acc}
  .amdhsa_group_segment_fixed_size 0
  .amdhsa_kernarg_size 80
  .amdhsa_user_sgpr_count 2
  .amdhsa_user_sgpr_kernarg_segment_ptr 1
  .amdhsa_system_sgpr_workgroup_id_x 1
.end_amdhsa_kernel
"""


def head(a, name):
    a.raw(".text")
    a.raw(f".globl {name}")
    a.raw(".p2align 8")
    a.raw(f".type {name},@function")
    a.label(name)


MFMA = "v_mfma_f32_32x32x16_bf16"
DIAG_OFF = 0x2000000
STAMP_NAMES = []


class Stamps:
    def __init__(self, a, opt, kidx, sW):
        self.a, self.on, self.k, self.n, self.sW = a, opt.get("stamp"), kidx, 0, sW
        self.names = []

    def __call__(self, name):
        if not self.on:
            return
        r = 60 + 2 * self.n
        self.n += 1
        self.names.append(name)
        assert self.n <= 16
        self.a(f"s_memrealtime s[{r}:{r+1}]" if self.on != 3 else f"s_memtime s[{r}:{r+1}]")
        self.a("s_waitcnt lgkmcnt(0)") if self.on == 2 else None

    def flush(self):
        if not self.on:
            return
        a = self.a
        a("s_waitcnt vmcnt(0) lgkmcnt(0)")
        self("end")
        a("s_load_dwordx2 s[96:97], s[0:1], 72")
        a("s_waitcnt lgkmcnt(0)")
        a(f"s_add_u32 s92, s96, {DIAG_OFF + self.k * 0x100000}")
        a("s_addc_u32 s93, s97, 0")
        a("s_mov_b32 s94, 0x100000")
        a("s_mov_b32 s95, 0x00020000")
        a("s_lshl_b32 s3, s2, 4")
        a(f"s_add_u32 s3, s3, s{self.sW}")
        a("s_lshl_b32 s3, s3, 6")
        a("v_mov_b32 v1, s3")
        for i in range(self.n):
            a(f"v_mov_b32 v2, s{60+2*i}")
            a(f"buffer_store_dword v2, v1, s[92:95], 0 offen offset:{4*i}")
        STAMP_NAMES.append(list(self.names))


def k1(opt):
    a = A()
    name = "qkv_kernel"
    head(a, name)
    sW, sBR, sMB, sNB, sXg, sWg, sXl, sWl, sT, sSC = 24, 25, 26, 27, 28, 29, 30, 31, 32, 33
    sQo, sKo, sVo = 34, 35, 36
    X, W, WS = 12, 16, 20
    a("s_cmp_ge_u32 s2, 256")
    a("s_cbranch_scc1 qkv_end")
    st_ = Stamps(a, opt, 0, sW)
    st_("start")
    a("s_load_dwordx4 s[4:7], s[0:1], 0")
    a("s_load_dwordx4 s[40:43], s[0:1], 32")
    a("s_load_dwordx2 s[8:9], s[0:1], 72")
    a(f"v_lshrrev_b32 v1, 6, v0")
    a(f"v_and_b32 v0, 63, v0")
    a(f"v_readfirstlane_b32 s{sW}, v1")
    a(f"s_and_b32 s3, s2, 7")
    a(f"s_lshr_b32 s{sT}, s2, 3")
    a(f"s_lshr_b32 s{sBR}, s3, 2")
    a(f"s_and_b32 s{sMB}, s3, 1")
    a(f"s_lshl_b32 s{sMB}, s{sMB}, 3")
    a(f"s_and_b32 s10, s{sT}, 7")
    a(f"s_add_u32 s{sMB}, s{sMB}, s10")
    a(f"s_bfe_u32 s{sNB}, s3, 0x10001")
    a(f"s_lshl_b32 s{sNB}, s{sNB}, 2")
    a(f"s_lshr_b32 s10, s{sT}, 3")
    a(f"s_add_u32 s{sNB}, s{sNB}, s10")
    vx0, vx1, vwq, vwk = 2, 3, 4, 5
    a(f"v_lshrrev_b32 v1, 3, v0")
    a(f"v_lshrrev_b32 v6, 4, v0")
    a(f"v_and_b32 v7, 7, v0")
    a(f"v_xor_b32 v8, v7, v6")
    a(f"v_lshlrev_b32 v8, 4, v8")
    a(f"v_lshl_add_u32 v{vx0}, v1, 10, v8")
    a(f"v_xor_b32 v{vx1}, 64, v{vx0}")
    a(f"v_and_b32 v8, 1, v6")
    a(f"v_lshlrev_b32 v8, 2, v8")
    a(f"v_xor_b32 v8, v7, v8")
    a(f"v_lshlrev_b32 v8, 4, v8")
    a(f"v_mul_u32_u24 v9, 3072, v1")
    a(f"v_add_u32 v{vwq}, v8, v9")
    a(f"v_xor_b32 v{vwk}, 32, v{vwq}")
    a(f"s_lshl_b32 s{sXg}, s{sMB}, 17")
    a(f"s_lshl_b32 s10, s{sW}, 15")
    a(f"s_add_u32 s{sXg}, s{sXg}, s10")
    a(f"s_mul_i32 s{sWg}, s{sW}, {16*3072}")
    a(f"s_lshl_b32 s10, s{sNB}, 7")
    a(f"s_add_u32 s{sWg}, s{sWg}, s10")
    a(f"s_lshl_b32 s{sXl}, s{sW}, 12")
    a(f"s_mul_i32 s{sWl}, s{sW}, 6144")
    a(f"s_add_u32 s{sWl}, s{sWl}, 65536")
    a("s_waitcnt lgkmcnt(0)")
    a(f"s_cmp_eq_u32 s{sBR}, 0")
    a(f"s_cselect_b32 s{X}, s4, s40")
    a(f"s_cselect_b32 s{X+1}, s5, s41")
    a(f"s_cselect_b32 s{W}, s6, s42")
    a(f"s_cselect_b32 s{W+1}, s7, s43")
    a(f"s_cselect_b32 s{sSC}, 1.0, {f32(0.25*LOG2E)}")
    a(f"s_mov_b32 s{X+2}, 0x200000")
    a(f"s_mov_b32 s{X+3}, 0x00020000")
    a(f"s_mov_b32 s{W+2}, 0x180000")
    a(f"s_mov_b32 s{W+3}, 0x00020000")

    def dma(stage):
        slot = stage % 4
        G = []
        for j in range(4):
            G.append(f"s_add_u32 m0, s{sXl}, {slot*16384 + j*1024}\n"
                     f"s_add_u32 s{sT}, s{sXg}, {j*8192 + stage*128}\n"
                     f"buffer_load_dwordx4 v{vx1 if j % 2 else vx0}, s[{X}:{X+3}], s{sT} offen lds")
        for g in range(3):
            for q in range(2):
                G.append(f"s_add_u32 m0, s{sWl}, {slot*24576 + (2*g+q)*1024}\n"
                         f"s_add_u32 s{sT}, s{sWg}, {(stage*64 + 8*q)*3072 + g*1024}\n"
                         f"buffer_load_dwordx4 v{vwk if g == 1 else vwq}, s[{W}:{W+3}], s{sT} offen lds")
        return G

    st_("kernarg")
    for st in range(4):
        for g in dma(st):
            a(g)
    st_("issued")
    a(f"s_lshl_b32 s10, s{sBR}, 23")
    a(f"s_add_u32 s8, s8, s10")
    a(f"s_addc_u32 s9, s9, 0")
    srd(a, WS, 8, 9, BR_STRIDE)
    ax = [10, 11, 12, 13]
    aw = [[14, 15], [16, 17], [18, 19]]
    vQ, vK, vV = 20, 21, 22
    a(f"s_and_b32 s10, s{sW}, 1")
    a(f"s_lshr_b32 s11, s{sW}, 1")
    a(f"v_and_b32 v1, 31, v0")
    a(f"v_lshrrev_b32 v6, 5, v0")
    a(f"v_bfe_u32 v7, v0, 1, 3")
    a(f"v_xor_b32 v7, v7, v6")
    a(f"s_lshl_b32 s3, s10, 13")
    a(f"v_lshl_add_u32 v8, v1, 7, s3")
    for ks in range(4):
        a(f"v_xor_b32 v9, {2*ks}, v7")
        a(f"v_lshl_add_u32 v{ax[ks]}, v9, 4, v8")
    a(f"v_bfe_u32 v7, v0, 4, 1")
    a(f"v_bfe_u32 v8, v0, 2, 2")
    a(f"v_lshl_add_u32 v9, v6, 3, v8")
    a(f"v_lshlrev_b32 v9, 7, v9")
    a(f"v_and_b32 v23, 3, v0")
    a(f"v_lshl_add_u32 v9, v23, 3, v9")
    a(f"v_add_u32 v9, 65536, v9")
    a(f"v_and_b32 v8, 2, v8")
    a(f"v_xor_b32 v8, v8, v7")
    a(f"s_lshl_b32 s3, s11, 1")
    a(f"v_xor_b32 v8, s3, v8")
    a(f"v_lshl_add_u32 v23, v8, 5, v9")
    a(f"v_add_u32 v{aw[2][0]}, 4096, v23")
    a(f"v_lshl_add_u32 v{aw[0][0]}, v7, 11, v23")
    a(f"v_xor_b32 v{aw[1][0]}, 32, v{aw[0][0]}")
    for t in range(3):
        a(f"v_add_u32 v{aw[t][1]}, 49152, v{aw[t][0]}")
    a(f"v_lshlrev_b32 v{vQ}, 4, v0")
    a(f"v_and_b32 v7, 0x33, v0")
    a(f"v_bfe_u32 v8, v0, 2, 1")
    a(f"v_lshl_or_b32 v7, v8, 3, v7")
    a(f"v_bfe_u32 v8, v0, 3, 1")
    a(f"v_lshl_or_b32 v7, v8, 2, v7")
    a(f"v_lshlrev_b32 v{vK}, 4, v7")
    a(f"v_and_b32 v7, 15, v0")
    a(f"v_lshlrev_b32 v7, 4, v7")
    a(f"v_lshl_add_u32 v7, v6, 9, v7")
    a(f"v_bfe_u32 v8, v0, 4, 1")
    a(f"v_lshl_add_u32 v{vV}, v8, 17, v7")
    a(f"s_lshl_b32 s{sMB}, s{sMB}, 2")
    a(f"s_lshl_b32 s10, s10, 1")
    a(f"s_add_u32 s{sMB}, s{sMB}, s10")
    a(f"s_lshl_b32 s{sNB}, s{sNB}, 2")
    a(f"s_add_u32 s{sNB}, s{sNB}, s3")
    a(f"s_lshl_b32 s{sQo}, s{sNB}, 16")
    a(f"s_lshl_b32 s10, s{sMB}, 10")
    a(f"s_add_u32 s{sQo}, s{sQo}, s10")
    a(f"s_lshl_b32 s{sKo}, s{sQo}, 1")
    a(f"s_add_u32 s{sKo}, s{sKo}, {KV_OFF}")

    FX = [[24, 28], [44, 48]]
    FW = [[32, 36, 40], [52, 56, 60]]
    ACC = [[64 + 16 * (3 * rbi + t) for t in range(3)] for rbi in range(2)]

    def reads(step):
        st, ks = divmod(step, 4)
        slot, s = st % 4, step % 2
        R = []
        for rbi in range(2):
            R.append(f"ds_read_b128 {vr(FX[s][rbi],4)}, v{ax[ks]} offset:{slot*16384 + rbi*4096}")
        for t in range(3):
            for half in range(2):
                R.append(f"ds_read_b64_tr_b16 {vr(FW[s][t]+2*half,2)}, v{aw[t][slot//2]} "
                         f"offset:{(slot%2)*24576 + ks*6144 + half*512}")
        return [R[0], R[2], R[3], R[4], R[5], R[1], R[6], R[7]]

    def mfmas(step):
        s = step % 2
        M = []
        for t, rbi in [(0, 0), (1, 0), (0, 1), (1, 1), (2, 0), (2, 1)]:
            d = vr(ACC[rbi][t], 16)
            c = d if step else "0"
            x, w = vr(FX[s][rbi], 4), vr(FW[s][t], 4)
            M.append(f"{MFMA} {d}, {w}, {x}, {c}" if t < 2 else f"{MFMA} {d}, {x}, {w}, {c}")
        return M

    vm = {0: 30, 1: 20, 2: 20, 3: 20, 4: 20, 5: 20, 6: 10, 7: 0}
    a(f"s_waitcnt vmcnt({vm[0]})")
    a("s_barrier")
    st_("stage0")
    for r in reads(0):
        a(r)
    pend = []
    for step in range(32):
        a("s_waitcnt lgkmcnt(0)")
        nxt = step + 1
        R = []
        if nxt < 32:
            if nxt % 4 == 0:
                st = nxt // 4
                a(f"s_waitcnt vmcnt({vm[st]})")
                a("s_barrier")
                st_(f"stage{st}")
                if st + 3 <= 7:
                    pend = dma(st + 3)
            R = reads(nxt)
        M = mfmas(step)
        for i, m in enumerate(M):
            a(m)
            for _ in range(2):
                if R:
                    a(R.pop(0))
            if i >= 2 and pend and (i < 5 or nxt % 4 == 0):
                a(pend.pop(0))
        if nxt % 4 == 3:
            assert not pend, (step, len(pend))
    st_("mainend")
    T = 24
    k = 0
    for t, rbi in [(0, 0), (1, 0), (0, 1), (1, 1)]:
        d = ACC[rbi][t]
        q, kk = T + 8 * (k % 4), T + 8 * (k % 4) + 4
        k += 1
        for i in range(8):
            a(f"v_mul_f32 v{d+i}, s{sSC}, v{d+i}")
        for i in range(4):
            a(f"v_cvt_pk_bf16_f32 v{q+i}, v{d+2*i}, v{d+2*i+1}")
        a(f"s_add_u32 s{sT}, s{sQo}, {t*65536 + rbi*1024}")
        a(f"buffer_store_dwordx4 {vr(q,4)}, v{vQ}, s[{WS}:{WS+3}], s{sT} offen")
        for i in range(4):
            a(f"v_cvt_pk_bf16_f32 v{kk+i}, v{d+8+2*i}, v{d+8+2*i+1}")
        a(f"s_add_u32 s{sT}, s{sKo}, {t*131072 + rbi*2048}")
        a(f"buffer_store_dwordx4 {vr(kk,4)}, v{vK}, s[{WS}:{WS+3}], s{sT} offen")
    for rbi in range(2):
        d = ACC[rbi][2]
        a(f"s_add_u32 s{sT}, s{sKo}, {rbi*2048 + 1024}")
        for tt in range(2):
            for i in range(4):
                a(f"v_cvt_pk_bf16_f32 v{d+8*tt+i}, v{d+8*tt+2*i}, v{d+8*tt+2*i+1}")
            a(f"buffer_store_dwordx4 {vr(d+8*tt,4)}, v{vV}, s[{WS}:{WS+3}], s{sT} offen offset:{tt*256}")
    st_("stored")
    st_.flush()
    a.label("qkv_end")
    a("s_endpgm")
    return name, a, descriptor(name, 160), f"grid=(256,1,1) block=(256,1,1) lds=163840"


def k2(opt):
    a = A()
    name = "attn_kernel"
    head(a, name)
    sW, sH, sQB, sRB, sT, sFB, sT2 = 24, 25, 26, 27, 28, 29, 30
    sMK = 32
    sC0 = 34
    KV, WS, PH, DB = 12, 16, 20, 36
    SCR = 131072
    vL16, vKp, vLa, vIdx, vL8 = 1, 2, 3, 4, 5
    vLim = vKp
    Q, C, S, O, Kf, Vf, PQ = 8, 12, [28, 44], 60, [76, 80], [84, 92], 100
    TMP = 108
    a("s_cmp_ge_u32 s2, 256")
    a("s_cbranch_scc1 attn_end")
    st_ = Stamps(a, opt, 1, sW)
    st_("start")
    a("s_load_dwordx2 s[4:5], s[0:1], 16")
    a("s_load_dwordx4 s[8:11], s[0:1], 64")
    a(f"v_lshrrev_b32 v1, 6, v0")
    a(f"v_and_b32 v0, 63, v0")
    a(f"v_readfirstlane_b32 s{sW}, v1")
    a(f"s_and_b32 s3, s2, 7")
    a(f"s_lshl_b32 s3, s3, 2")
    a(f"s_bfe_u32 s{sH}, s2, 0x20003")
    a(f"s_add_u32 s{sH}, s{sH}, s3")
    a(f"s_lshr_b32 s{sQB}, s2, 5")
    a(f"s_lshl_b32 s{sRB}, s{sQB}, 3")
    a(f"s_add_u32 s{sRB}, s{sRB}, s{sW}")
    a(f"s_mov_b32 s{sMK}, 0x0000ffff")
    a(f"s_mov_b32 s{sMK+1}, 0x0000ffff")
    a(f"s_mov_b32 s{sFB}, 0")
    a(f"v_lshlrev_b32 v{vL16}, 4, v0")
    a(f"v_lshlrev_b32 v{vL8}, 3, v0")
    a(f"v_and_b32 v7, 0x33, v0")
    a(f"v_bfe_u32 v6, v0, 2, 1")
    a(f"v_lshl_or_b32 v7, v6, 3, v7")
    a(f"v_bfe_u32 v6, v0, 3, 1")
    a(f"v_lshl_or_b32 v7, v6, 2, v7")
    a(f"v_lshlrev_b32 v{vKp}, 4, v7")
    a(f"v_and_b32 v6, 15, v0")
    a(f"v_lshlrev_b32 v6, 1, v6")
    a(f"v_lshrrev_b32 v7, 5, v0")
    a(f"v_lshl_add_u32 v6, v7, 7, v6")
    for i in range(16):
        a(f"v_mov_b32 v{Vf[0]+i}, 0x3f803f80")
    a("s_waitcnt lgkmcnt(0)")
    srd(a, PH, 4, 5, 16384)
    srd(a, WS, 10, 11, WS_BYTES)
    srd(a, DB, 8, 9, 256)
    a(f"s_lshl_b32 s3, s{sH}, 17")
    a(f"s_add_u32 s3, s3, {BR_STRIDE + KV_OFF}")
    a(f"s_add_u32 s{KV}, s10, s3")
    a(f"s_addc_u32 s{KV+1}, s11, 0")
    a(f"s_mov_b32 s{KV+2}, 131072")
    a(f"s_mov_b32 s{KV+3}, 0x00020000")
    WPL = TMP
    WP = 116
    KA, QA = Kf[0], Kf[1]
    VA = Vf[0]
    a(f"s_lshl_b32 s{sT}, s{sH}, 9")
    for j in range(8):
        d = 8 * (j // 4) + j % 4
        a(f"buffer_load_ushort v{WPL+j}, v6, s[{PH}:{PH+3}], s{sT} offen offset:{d*32}")
    a(f"s_lshl_b32 s3, s{sH}, 6")
    a(f"s_add_u32 s3, s3, s{sRB}")
    a(f"s_lshl_b32 s{sT}, s3, 11")
    a(f"s_add_u32 s{sT}, s{sT}, {KV_OFF}")
    a(f"buffer_load_dwordx4 {vr(KA,4)}, v{vKp}, s[{WS}:{WS+3}], s{sT} offen")
    a(f"s_mov_b64 exec, s[{sMK}:{sMK+1}]")
    a(f"buffer_load_dwordx4 {vr(VA,4)}, v{vL16}, s[{WS}:{WS+3}], s{sT} offen offset:1024")
    a(f"buffer_load_dwordx4 {vr(VA+4,4)}, v{vL16}, s[{WS}:{WS+3}], s{sT} offen offset:1280")
    a(f"s_mov_b64 exec, -1")
    a(f"s_lshl_b32 s{sT}, s3, 10")
    a(f"buffer_load_dwordx4 {vr(QA,4)}, v{vL16}, s[{WS}:{WS+3}], s{sT} offen")
    a(f"s_add_u32 s{sT}, s{sT}, {BR_STRIDE}")
    a(f"buffer_load_dwordx4 {vr(Q,4)}, v{vL16}, s[{WS}:{WS+3}], s{sT} offen")
    a(f"s_lshl_b32 m0, s{sW}, 10")
    for c in range(16):
        a(f"buffer_load_dwordx4 v{vL16}, s[{KV}:{KV+3}], m0 offen lds")
        if c < 15:
            a(f"s_add_u32 m0, m0, 8192")
    st_("issued")
    a(f"v_mov_b32 v{vIdx}, 0xdddddddd")
    a(f"v_mov_b32 v{vLim}, 0x7e800000")
    a(f"v_mov_b32 v{vLa}, v{vL16}")
    ID = O
    a(f"v_and_b32 v6, 31, v0")
    a(f"v_lshlrev_b32 v7, 2, v7")
    a(f"v_sub_u32 v6, v6, v7")
    a(f"v_mov_b32 v7, 0x3f80")
    for t in range(2):
        for rr, base in enumerate([0, 2, 8, 10]):
            r = ID + 4 * t + rr
            a(f"v_subrev_u32 v{r}, {16*t+base}, v6")
            a(f"v_cmp_gt_u32 s[{sC0}:{sC0+1}], 2, v{r}")
            a(f"v_lshlrev_b32 v{r}, 4, v{r}")
            a(f"v_lshlrev_b32 v{r}, v{r}, v7")
            a(f"v_cndmask_b32 v{r}, 0, v{r}, s[{sC0}:{sC0+1}]")
    vC = 7
    a(f"v_mov_b32 v{vC}, {f32(LOG2E)}")
    a("s_waitcnt vmcnt(21)")
    for i in range(4):
        a(f"v_lshl_or_b32 v{WP+i}, v{WPL+2*i+1}, 16, v{WPL+2*i}")

    def phi(src, T, E, out):
        x, y, z = TMP, TMP + 1, TMP + 2
        a(f"{MFMA} {vr(T,16)}, {vr(WP,4)}, {vr(src,4)}, 0")
        if opt.get("round_p"):
            for i in range(4):
                a(f"v_cvt_pk_bf16_f32 v{T+8+i}, v{T+2*i}, v{T+2*i+1}")
            for i in range(4):
                a(f"v_lshlrev_b32 v{T+2*i}, 16, v{T+8+i}")
                a(f"v_and_b32 v{T+2*i+1}, 0xffff0000, v{T+8+i}")
        a(f"v_max3_f32 v{x}, v{T}, v{T+1}, v{T+2}")
        a(f"v_max3_f32 v{y}, -v{T}, -v{T+1}, -v{T+2}")
        a(f"v_max3_f32 v{x}, v{x}, v{T+3}, v{T+4}")
        a(f"v_max3_f32 v{y}, v{y}, -v{T+3}, -v{T+4}")
        a(f"v_max3_f32 v{x}, v{x}, v{T+5}, v{T+6}")
        a(f"v_max3_f32 v{y}, v{y}, -v{T+5}, -v{T+6}")
        a(f"v_max_f32 v{x}, v{x}, v{T+7}")
        a(f"v_max_f32_e64 v{y}, v{y}, -v{T+7}")
        a(f"v_permlane32_swap_b32 v{x}, v{y}")
        a(f"v_max_f32 v{x}, v{x}, v{y}")
        a(f"v_mul_f32 v{x}, v{vC}, v{x}")
        a(f"v_mov_b32 v{y}, v{x}")
        a(f"v_permlane32_swap_b32 v{x}, v{y}")
        for i in range(8):
            a(f"v_fma_f32 v{E+i}, v{T+i}, v{vC}, -v{x}")
            a(f"v_fma_f32 v{E+8+i}, -v{T+i}, v{vC}, -v{y}")
        for i in range(16):
            a(f"v_exp_f32 v{E+i}, v{E+i}")
        a(f"v_add_f32 v{T}, v{E}, v{E+1}")
        a(f"v_add_f32 v{T+1}, v{E+2}, v{E+3}")
        a(f"v_add_f32 v{T+2}, v{E+4}, v{E+5}")
        a(f"v_add_f32 v{T+3}, v{E+6}, v{E+7}")
        a(f"v_add_f32 v{T+4}, v{E+8}, v{E+9}")
        a(f"v_add_f32 v{T+5}, v{E+10}, v{E+11}")
        a(f"v_add_f32 v{T+6}, v{E+12}, v{E+13}")
        a(f"v_add_f32 v{T+7}, v{E+14}, v{E+15}")
        a(f"v_add_f32 v{T}, v{T}, v{T+1}")
        a(f"v_add_f32 v{T+2}, v{T+2}, v{T+3}")
        a(f"v_add_f32 v{T+4}, v{T+4}, v{T+5}")
        a(f"v_add_f32 v{T+6}, v{T+6}, v{T+7}")
        a(f"v_add_f32 v{x}, v{T}, v{T+2}")
        a(f"v_add_f32 v{y}, v{T+4}, v{T+6}")
        a(f"v_permlane32_swap_b32 v{x}, v{y}")
        a(f"v_add_f32 v{x}, v{x}, v{y}")
        a(f"v_rcp_f32 v{x}, v{x}")
        a(f"v_mov_b32 v{y}, v{x}")
        a(f"v_permlane32_swap_b32 v{x}, v{y}")
        for i in range(8):
            a(f"v_mul_f32 v{E+i}, v{E+i}, v{x}")
            a(f"v_mul_f32 v{E+8+i}, v{E+8+i}, v{y}")
        for i in range(8):
            a(f"v_cvt_pk_bf16_f32 v{out+i}, v{E+2*i}, v{E+2*i+1}")

    a("s_waitcnt vmcnt(20)")
    st_("kA")
    PK = 120
    phi(KA, S[0], S[1], PK)
    a(f"{MFMA} {vr(C,16)}, {vr(PK,4)}, {vr(ID,4)}, 0")
    a(f"{MFMA} {vr(C,16)}, {vr(PK+4,4)}, {vr(ID+4,4)}, {vr(C,16)}")
    a("s_waitcnt vmcnt(17)")
    phi(QA, S[0], S[1], PQ)
    for i in range(8):
        a(f"v_cvt_pk_bf16_f32 v{PK+i}, v{C+2*i}, v{C+2*i+1}")
    a(f"{MFMA} {vr(C,16)}, {vr(PK,4)}, {vr(VA,4)}, 0")
    a(f"{MFMA} {vr(C,16)}, {vr(PK+4,4)}, {vr(VA+4,4)}, {vr(C,16)}")
    a(f"s_lshl_b32 s3, s{sW}, 12")
    a(f"s_add_u32 s3, s3, {SCR}")
    a(f"v_add_u32 v6, s3, v{vL8}")
    for p in range(8):
        a(f"ds_write_b64 v6, {vr(C+2*p,2)} offset:{p*512}")
    SEG1 = opt.get("seg1", 16)
    rounds = (SEG1 + 2 + 3) // 4
    st_("Adone")
    a(f"s_waitcnt vmcnt({16-rounds}) lgkmcnt(0)")
    a("s_barrier")
    st_("bar1")
    a(f"s_lshl_b32 s3, s{sW}, 9")
    a(f"s_add_u32 s3, s3, {SCR}")
    a(f"v_add_u32 v6, s3, v{vL8}")
    for p in range(8):
        a(f"ds_read_b64 {vr(S[1]+2*p,2)}, v6 offset:{p*4096}")
    a(f"ds_read_b128 {vr(Kf[0],4)}, v{vLa}")
    a(f"s_lshl_b32 s{sT2}, s{sH}, 15")
    a(f"s_lshl_b32 s3, s{sW}, 9")
    a(f"s_add_u32 s{sT2}, s{sT2}, s3")
    a(f"s_add_u32 s{sT2}, s{sT2}, {PART_OFF}")
    a(f"s_lshl_b32 s3, s{sQB}, 12")
    a(f"s_add_u32 s{sT}, s{sT2}, s3")
    a("s_waitcnt lgkmcnt(0)")
    a(f"{MFMA} {vr(S[0],16)}, {vr(Kf[0],4)}, {vr(Q,4)}, 0")
    s1 = S[1]
    for step in (8, 4, 2):
        for i in range(step):
            a(f"v_add_f32 v{s1+i}, v{s1+i}, v{s1+i+step}")
    a(f"buffer_store_dwordx2 {vr(s1,2)}, v{vL8}, s[{WS}:{WS+3}], s{sT} offen sc1")
    x, y = TMP, TMP + 1
    s0 = S[0]
    a(f"v_max3_f32 v{x}, v{s0}, v{s0+1}, v{s0+2}")
    a(f"v_max3_f32 v{y}, v{s0+3}, v{s0+4}, v{s0+5}")
    for i in range(2):
        a(f"v_max3_f32 v{x}, v{x}, v{s0+6+4*i}, v{s0+7+4*i}")
        a(f"v_max3_f32 v{y}, v{y}, v{s0+8+4*i}, v{s0+9+4*i}")
    a(f"v_max3_f32 v{x}, v{x}, v{s0+14}, v{s0+15}")
    a(f"v_max_f32 v{x}, v{x}, v{y}")
    a(f"v_add_f32 v{x}, {f32(M_OFF)}, v{x}")
    a.label("attn_restart")
    a(f"v_mov_b32 v{y}, v{x}")
    a(f"v_permlane32_swap_b32 v{x}, v{y}")
    a(f"v_max_f32 v{x}, v{x}, v{y}")
    for i in range(16):
        a(f"v_sub_f32 v{C+i}, 0, v{x}")
    a(f"ds_read_b128 {vr(Kf[0],4)}, v{vLa}")
    a(f"ds_read_b128 {vr(Kf[1],4)}, v{vLa} offset:2048")
    a(f"s_mov_b64 exec, s[{sMK}:{sMK+1}]")
    a(f"ds_read_b128 {vr(Vf[0],4)}, v{vLa} offset:1024")
    a(f"ds_read_b128 {vr(Vf[0]+4,4)}, v{vLa} offset:1280")
    a(f"s_mov_b64 exec, -1")
    for i in range(16):
        a(f"v_mov_b32 v{O+i}, 0")
    a("s_waitcnt lgkmcnt(3)")
    a(f"{MFMA} {vr(S[0],16)}, {vr(Kf[0],4)}, {vr(Q,4)}, {vr(C,16)}")
    a.nop(10)

    SM = "v_smfmac_f32_32x32x32_bf16"
    base = [0]

    def lds_off(t):
        return (t - base[0]) * 2048

    def tile(t):
        b, nb = t % 2, 1 - t % 2
        e = [f"v_exp_f32 v{S[b]+i}, v{S[b]+i}" for i in range(16)]
        a("s_waitcnt lgkmcnt(0)")
        a(e[0]); a(e[1])
        if t > 0:
            a(f"{SM} {vr(O,16)}, {vr(Vf[nb]+4,4)}, {vr(S[nb]+8,8)}, v{vIdx}")
        if t + 1 < 64:
            a(f"s_mov_b64 exec, s[{sMK}:{sMK+1}]")
            a(f"ds_read_b128 {vr(Vf[nb],4)}, v{vLa} offset:{lds_off(t+1)+1024}")
            a(f"ds_read_b128 {vr(Vf[nb]+4,4)}, v{vLa} offset:{lds_off(t+1)+1280}")
            a(f"s_mov_b64 exec, -1")
        for i in range(2, 6):
            a(e[i])
        if t + 1 < 64:
            a(f"{MFMA} {vr(S[nb],16)}, {vr(Kf[nb],4)}, {vr(Q,4)}, {vr(C,16)}")
        if t + 2 == 32:
            a(f"v_add_u32 v{vLa}, 65536, v{vLa}")
            base[0] = 32
        if t + 2 < 64:
            a(f"ds_read_b128 {vr(Kf[b],4)}, v{vLa} offset:{lds_off(t+2)}")
        for i in range(6, 11):
            a(e[i])
        a(f"{SM} {vr(O,16)}, {vr(Vf[b],4)}, {vr(S[b],8)}, v{vIdx}")
        for i in range(11, 16):
            a(e[i])

    def job_barrier2():
        a(f"s_cmp_lg_u32 s{sFB}, 0")
        a("s_cbranch_scc1 attn_j2_skip")
        a("s_waitcnt vmcnt(0)")
        a("s_barrier")
        a(f"s_cmp_lg_u32 s{sW}, 0")
        a("s_cbranch_scc1 attn_j2_skip")
        a(f"s_lshl_b32 s3, s{sH}, 2")
        a(f"v_mov_b32 v{TMP}, 1")
        a(f"v_mov_b32 v{TMP+1}, s3")
        a("s_mov_b64 exec, 1")
        a(f"buffer_atomic_add v{TMP}, v{TMP+1}, s[{DB}:{DB+3}], 0 offen sc1")
        a("s_mov_b64 exec, -1")
        a.label("attn_j2_skip")

    def job_gather():
        a(f"s_cmp_lg_u32 s{sFB}, 0")
        a("s_cbranch_scc1 attn_j3_skip")
        a(f"s_lshl_b32 s3, s{sH}, 2")
        a(f"v_mov_b32 v{TMP+1}, s3")
        a.label("attn_poll")
        a(f"buffer_load_dword v{TMP}, v{TMP+1}, s[{DB}:{DB+3}], 0 offen sc1")
        a("s_waitcnt vmcnt(0)")
        a(f"v_readfirstlane_b32 s3, v{TMP}")
        a("s_cmp_ge_u32 s3, 8")
        a("s_cbranch_scc1 attn_polled")
        a("s_branch attn_poll")
        a.label("attn_polled")
        for qb in range(8):
            a(f"s_add_u32 s3, s{sT2}, {qb*4096}")
            a(f"buffer_load_dwordx2 {vr(TMP+2*qb,2)}, v{vL8}, s[{WS}:{WS+3}], s3 offen sc1")
        a(f"s_lshr_b32 s3, s{sW}, 2")
        a(f"s_lshl_b32 s3, s3, 10")
        a(f"s_and_b32 s{sT}, s{sW}, 3")
        a(f"s_lshl_b32 s{sT}, s{sT}, 2")
        a(f"s_add_u32 s3, s3, s{sT}")
        a(f"s_add_u32 s3, s3, {SCR}")
        a(f"v_add_u32 v6, s3, v{vL16}")
        a("s_waitcnt vmcnt(0)")
        for step in (8, 4, 2):
            for i in range(step):
                a(f"v_add_f32 v{TMP+i}, v{TMP+i}, v{TMP+i+step}")
        a(f"v_cvt_pk_bf16_f32 v{TMP}, v{TMP}, v{TMP+1}")
        a(f"ds_write_b32 v6, v{TMP}")
        a.label("attn_j3_skip")

    def job_oa():
        a(f"s_cmp_lg_u32 s{sFB}, 0")
        a("s_cbranch_scc1 attn_j4_skip")
        a("s_waitcnt lgkmcnt(0)")
        a("s_barrier")
        a(f"v_add_u32 v6, {SCR}, v{vL16}")
        a(f"ds_read_b128 {vr(TMP,4)}, v6")
        a(f"ds_read_b128 {vr(TMP+4,4)}, v6 offset:1024")
        a(f"s_lshl_b32 s3, s{sRB}, 5")
        a(f"s_add_u32 s3, s3, s{sH}")
        a(f"s_lshl_b32 s3, s3, 10")
        a(f"s_add_u32 s3, s3, {O_OFF}")
        a("s_waitcnt lgkmcnt(0)")
        ND = 116
        a(f"{MFMA} {vr(ND,16)}, {vr(TMP,4)}, {vr(PQ,4)}, 0")
        a(f"{MFMA} {vr(ND,16)}, {vr(TMP+4,4)}, {vr(PQ+4,4)}, {vr(ND,16)}")
        a(f"v_add_f32 v{ND+8}, {f32(1e-6)}, v{ND+8}")
        a(f"v_rcp_f32 v{ND+8}, v{ND+8}")
        for i in range(8):
            a(f"v_mul_f32 v{ND+i}, v{ND+i}, v{ND+8}")
        for i in range(4):
            a(f"v_cvt_pk_bf16_f32 v{TMP+i}, v{ND+2*i}, v{ND+2*i+1}")
        a(f"buffer_store_dwordx4 {vr(TMP,4)}, v{vL16}, s[{WS}:{WS+3}], s3 offen")
        a.label("attn_j4_skip")

    plan = opt.get("plan") or {0: ("p3",), 10: ("p2",), 14: ("p1",), SEG1: ("b2", "p3"), 36: ("g",), 40: ("p2",),
                               48: ("p1",), 52: ("oa", "p3"), 60: ("p2",), 62: ("p1",)}
    for t in range(64):
        if t in (0, 8, 16, 24, 32, 40, 48, 56):
            st_(f"t{t}")
        for act in plan.get(t, ()):
            if act[0] == "p":
                a(f"s_setprio {act[1]}")
            elif act == "b2":
                job_barrier2()
            elif act == "g":
                job_gather()
            elif act == "oa":
                job_oa()
        tile(t)
    a(f"s_lshl_b32 s3, s{sRB}, 5")
    a(f"s_add_u32 s3, s3, s{sH}")
    a(f"{SM} {vr(O,16)}, {vr(Vf[1]+4,4)}, {vr(S[1]+8,8)}, v{vIdx}")
    a(f"s_lshl_b32 s3, s3, 10")
    a(f"s_add_u32 s3, s3, {BR_STRIDE + O_OFF}")
    a(f"s_cmp_lg_u32 s{sFB}, 0")
    a("s_cbranch_scc1 attn_final")
    a(f"v_add_f32_e64 v{x}, abs(v{O}), abs(v{O+1})")
    a(f"v_add_f32_e64 v{y}, abs(v{O+2}), abs(v{O+3})")
    a(f"v_add_f32_e64 v{x}, v{x}, abs(v{O+4})")
    a(f"v_add_f32_e64 v{y}, v{y}, abs(v{O+5})")
    a(f"v_add_f32_e64 v{x}, v{x}, abs(v{O+6})")
    a(f"v_add_f32_e64 v{y}, v{y}, abs(v{O+7})")
    a(f"v_add_f32 v{x}, v{x}, v{O+8}")
    a(f"v_add_f32 v{x}, v{x}, v{y}")
    a(f"v_cmp_nle_f32 vcc, v{x}, v{vLim}")
    a("s_cbranch_vccz attn_final")
    a(f"s_mov_b32 s{sFB}, 1")
    a(f"v_mov_b32 v{vLa}, v{vL16}")
    a(f"v_mov_b32 v{x}, 0xff800000")
    a(f"s_mov_b32 s3, 64")
    a.label("attn_maxloop")
    a(f"ds_read_b128 {vr(Kf[0],4)}, v{vLa}")
    a(f"v_add_u32 v{vLa}, 2048, v{vLa}")
    a("s_waitcnt lgkmcnt(0)")
    a(f"{MFMA} {vr(S[0],16)}, {vr(Kf[0],4)}, {vr(Q,4)}, 0")
    for i in range(8):
        a(f"v_max3_f32 v{x}, v{x}, v{s0+2*i}, v{s0+2*i+1}")
    a("s_sub_u32 s3, s3, 1")
    a("s_cmp_lg_u32 s3, 0")
    a("s_cbranch_scc1 attn_maxloop")
    a(f"v_mov_b32 v{vLa}, v{vL16}")
    a("s_branch attn_restart")
    a.label("attn_final")
    st_("t64")
    a.nop(12)
    a(f"v_rcp_f32 v{x}, v{O+8}")
    for i in range(8):
        a(f"v_mul_f32 v{O+i}, v{O+i}, v{x}")
    for i in range(4):
        a(f"v_cvt_pk_bf16_f32 v{TMP+4+i}, v{O+2*i}, v{O+2*i+1}")
    a(f"buffer_store_dwordx4 {vr(TMP+4,4)}, v{vL16}, s[{WS}:{WS+3}], s3 offen")
    st_.flush()
    a.label("attn_end")
    a("s_endpgm")
    return name, a, descriptor(name, 136), f"grid=(256,1,1) block=(512,1,1) lds=163840"


def k3(opt):
    a = A()
    name = "proj_kernel"
    head(a, name)
    sW, sBR, sRB, sNB, sT, sOg, sWg = 24, 25, 26, 27, 28, 29, 30
    W, WS, OUT = 12, 16, 20
    a("s_cmp_ge_u32 s2, 256")
    a("s_cbranch_scc1 proj_end")
    st_ = Stamps(a, opt, 2, sW)
    st_("start")
    a("s_load_dwordx2 s[4:5], s[0:1], 24")
    a("s_load_dwordx4 s[8:11], s[0:1], 48")
    a("s_load_dwordx2 s[6:7], s[0:1], 72")
    a(f"v_lshrrev_b32 v1, 6, v0")
    a(f"v_and_b32 v0, 63, v0")
    a(f"v_readfirstlane_b32 s{sW}, v1")
    a(f"s_bfe_u32 s{sBR}, s2, 0x10002")
    a(f"s_and_b32 s{sRB}, s2, 3")
    a(f"s_lshl_b32 s{sRB}, s{sRB}, 2")
    a(f"s_bfe_u32 s3, s2, 0x20003")
    a(f"s_add_u32 s{sRB}, s{sRB}, s3")
    a(f"s_lshl_b32 s{sRB}, s{sRB}, 2")
    a(f"s_add_u32 s{sRB}, s{sRB}, s{sW}")
    a(f"s_lshr_b32 s{sNB}, s2, 5")
    vL16, vw, aw0, aw1, vO = 1, 2, 3, 4, 5
    a(f"v_lshlrev_b32 v{vL16}, 4, v0")
    a(f"v_lshrrev_b32 v6, 3, v0")
    a(f"v_bfe_u32 v7, v0, 4, 1")
    a(f"v_lshlrev_b32 v8, 1, v7")
    a(f"v_and_b32 v9, 7, v0")
    a(f"v_xor_b32 v8, v8, v9")
    a(f"v_lshlrev_b32 v8, 4, v8")
    a(f"v_lshl_add_u32 v{vw}, v6, 10, v8")
    a(f"s_lshl_b32 s{sOg}, s{sRB}, 15")
    a(f"s_lshl_b32 s3, s{sBR}, 23")
    a(f"s_add_u32 s{sOg}, s{sOg}, s3")
    a(f"s_add_u32 s{sOg}, s{sOg}, {O_OFF}")
    a(f"s_lshl_b32 s{sWg}, s{sW}, 13")
    a(f"s_lshl_b32 s3, s{sNB}, 7")
    a(f"s_add_u32 s{sWg}, s{sWg}, s3")
    a(f"s_lshl_b32 m0, s{sW}, 10")
    a("s_waitcnt lgkmcnt(0)")
    a(f"s_cmp_eq_u32 s{sBR}, 0")
    a(f"s_cselect_b32 s{W}, s4, s8")
    a(f"s_cselect_b32 s{W+1}, s5, s9")
    a(f"s_mov_b32 s{W+2}, 0x80000")
    a(f"s_mov_b32 s{W+3}, 0x00020000")
    srd(a, WS, 6, 7, WS_BYTES)
    OF = 64
    for c in range(16):
        a(f"buffer_load_dwordx4 v{vw}, s[{W}:{W+3}], s{sWg} offen lds")
        a(f"buffer_load_dwordx4 {vr(OF+8*c,4)}, v{vL16}, s[{WS}:{WS+3}], s{sOg} offen offset:{(c%2)*2048}")
        a(f"buffer_load_dwordx4 {vr(OF+8*c+4,4)}, v{vL16}, s[{WS}:{WS+3}], s{sOg} offen offset:{(c%2)*2048+1024}")
        if c < 15:
            a(f"s_add_u32 m0, m0, 4096")
            a(f"s_add_u32 s{sWg}, s{sWg}, 32768")
            if c % 2:
                a(f"s_add_u32 s{sOg}, s{sOg}, 4096")
    st_("issued")
    srd(a, OUT, 10, 11, 0x400000)
    a(f"v_lshrrev_b32 v6, 5, v0")
    a(f"v_bfe_u32 v8, v0, 2, 2")
    a(f"v_lshl_add_u32 v9, v6, 2, v8")
    a(f"v_lshlrev_b32 v9, 7, v9")
    a(f"v_lshl_add_u32 v9, v7, 4, v9")
    a(f"v_bfe_u32 v10, v0, 1, 1")
    a(f"v_lshl_add_u32 v9, v10, 3, v9")
    a(f"v_and_b32 v10, 1, v0")
    a(f"v_lshl_add_u32 v9, v10, 6, v9")
    a(f"v_lshrrev_b32 v8, 1, v8")
    a(f"v_lshl_add_u32 v{aw0}, v8, 5, v9")
    a(f"v_xor_b32 v{aw1}, 32, v{aw0}")
    a(f"v_and_b32 v8, 31, v0")
    a(f"v_lshlrev_b32 v8, 11, v8")
    a(f"v_lshl_add_u32 v{vO}, v6, 6, v8")
    a(f"s_lshl_b32 s{sT}, s{sRB}, 16")
    a(f"s_lshl_b32 s3, s{sBR}, 10")
    a(f"s_add_u32 s{sT}, s{sT}, s3")
    a(f"s_lshl_b32 s3, s{sNB}, 7")
    a(f"s_add_u32 s{sT}, s{sT}, s3")
    FW = [[12, 16], [20, 24]]
    ACC = [32, 48]

    def reads(h):
        s = h % 2
        return [f"ds_read_b64_tr_b16 {vr(FW[s][T]+2*half,2)}, v{aw1 if T else aw0} offset:{h*2048+half*1024}"
                for T in range(2) for half in range(2)]

    a("s_waitcnt vmcnt(36)")
    a("s_barrier")
    st_("ph0")
    for r in reads(0):
        a(r)
    for h in range(32):
        a("s_waitcnt lgkmcnt(0)")
        R = []
        if h + 1 < 32:
            if (h + 1) % 8 == 0:
                a(f"s_waitcnt vmcnt({36 - 12*((h+1)//8)})")
                a("s_barrier")
                st_(f"ph{(h+1)//8}")
            R = reads(h + 1)
        for T in range(2):
            d = vr(ACC[T], 16)
            a(f"{MFMA} {d}, {vr(FW[h%2][T],4)}, {vr(OF+4*h,4)}, {d if h else 0}")
            for _ in range(2):
                if R:
                    a(R.pop(0))
    st_("mainend")
    for T in range(2):
        for i in range(8):
            a(f"v_cvt_pk_bf16_f32 v{OF+8*T+i}, v{ACC[T]+2*i}, v{ACC[T]+2*i+1}")
        for q in range(2):
            a(f"buffer_store_dwordx4 {vr(OF+8*T+4*q,4)}, v{vO}, s[{OUT}:{OUT+3}], s{sT} offen offset:{T*32+q*16}")
    st_("stored")
    st_.flush()
    a.label("proj_end")
    a("s_endpgm")
    return name, a, descriptor(name, 192), f"grid=(256,1,1) block=(256,1,1) lds=65536"


def build(opt):
    ref = open(f"cdna_kernels/{NAME}.s.ref").read().split("\n")
    hdr = [l for l in ref if l.startswith(";")]
    hdr = hdr[:[i for i, l in enumerate(hdr) if "Override launch" in l][0]]
    ks = [k(opt) for k in (k1, k2, k3)]
    out = "\n".join(hdr) + "\n"
    for extra in range(opt.get("pre_launch", 0)):
        out += f"; @launch kernel=nop_kernel grid=(256,1,1) block=(64,1,1) lds=0\n"
    for name, a, desc, launch in ks:
        out += f"; @launch kernel={name} {launch}\n"
    if opt.get("diag"):
        out += f"; @launch kernel=diag_kernel grid=(1,1,1) block=(64,1,1) lds=0\n"
    for extra in range(opt.get("extra_launch", 0)):
        out += f"; @launch kernel=nop_kernel grid=(256,1,1) block=(64,1,1) lds=0\n"
    out += '.amdgcn_target "amdgcn-amd-amdhsa--gfx950"\n'
    for name, a, desc, launch in ks:
        out += a.text() + desc
        if opt.get("verbose"):
            print(name, "lines", len(a.L), "nops inserted:", [(r, t) for _, r, t in a.inserted], file=sys.stderr)
    if opt.get("diag"):
        kA, iA, kB, iB, mult = opt["diag"]
        a = A()
        head(a, "diag_kernel")
        a("s_cmp_ge_u32 s2, 1")
        a("s_cbranch_scc1 diag_end")
        a("s_load_dwordx2 s[4:5], s[0:1], 72")
        a("s_waitcnt lgkmcnt(0)")
        a(f"s_add_u32 s6, s4, {DIAG_OFF + kA*0x100000 + 4*iA}")
        a("s_addc_u32 s7, s5, 0")
        a(f"s_add_u32 s8, s4, {DIAG_OFF + kB*0x100000 + 4*iB}")
        a("s_addc_u32 s9, s5, 0")
        a("s_load_dword s10, s[6:7], 0")
        a("s_load_dword s11, s[8:9], 0")
        a("s_memrealtime s[12:13]")
        a("s_waitcnt lgkmcnt(0)")
        if kB == 9:
            a("s_mov_b32 s11, s12")
        a("s_sub_u32 s10, s11, s10")
        a("s_min_u32 s10, s10, 20000")
        a(f"s_mul_i32 s10, s10, {mult}")
        a.label("diag_loop")
        a("s_memrealtime s[14:15]")
        a("s_waitcnt lgkmcnt(0)")
        a("s_sub_u32 s14, s14, s12")
        a("s_cmp_lt_u32 s14, s10")
        a("s_cbranch_scc1 diag_loop")
        a.label("diag_end")
        a("s_endpgm")
        out += a.text() + descriptor("diag_kernel", 8)
    if opt.get("extra_launch") or opt.get("pre_launch"):
        a = A()
        head(a, "nop_kernel")
        if opt.get("diag"):
            a("s_mov_b32 s24, 0")
            a("s_cmp_ge_u32 s2, 256")
            a("s_cbranch_scc1 nop_end")
            st_ = Stamps(a, opt, 3, 24)
            st_.flush()
            a.label("nop_end")
        a("s_endpgm")
        out += a.text() + descriptor("nop_kernel", 8)
    return out


if __name__ == "__main__":
    opt = {"verbose": True}
    path = f"cdna_kernels/{NAME}.s"
    for arg in sys.argv[1:]:
        if "=" in arg:
            k, v = arg.split("=", 1)
            opt[k] = eval(v)
        else:
            path = arg
    open(path, "w").write(build(opt))
    if opt.get("stamp"):
        open(path + ".names", "w").write(repr(STAMP_NAMES))
```

```python
import sys, struct, math
from asmlib import A

NAME = "concat_heads__linear_kernel_hedgehog__softmax_full_mha__prompt"
BR_STRIDE = 0x800000
Q_OFF, KV_OFF, O_OFF = 0, 0x200000, 0x600000
PART_OFF = 0x1000000
WS_BYTES = 0x1100000
LOG2E = 1.4426950408889634
M_OFF = 80.0


def f32(x):
    return "0x%08x" % struct.unpack("<I", struct.pack("<f", x))[0]


def vr(b, n):
    return f"v[{b}:{b+n-1}]" if n > 1 else f"v{b}"


def srd(a, d, lo, hi, size):
    a(f"s_mov_b32 s{d}, s{lo}")
    a(f"s_mov_b32 s{d+1}, s{hi}")
    a(f"s_mov_b32 s{d+2}, {hex(size)}")
    a(f"s_mov_b32 s{d+3}, 0x00020000")


def descriptor(name, vgpr, sgpr=102):
    acc = (vgpr + 3) // 4 * 4
    return f""".section .rodata,"a"
.p2align 6
.amdhsa_kernel {name}
  .amdhsa_next_free_vgpr {vgpr}
  .amdhsa_next_free_sgpr {sgpr}
  .amdhsa_accum_offset {acc}
  .amdhsa_group_segment_fixed_size 0
  .amdhsa_kernarg_size 80
  .amdhsa_user_sgpr_count 2
  .amdhsa_user_sgpr_kernarg_segment_ptr 1
  .amdhsa_system_sgpr_workgroup_id_x 1
.end_amdhsa_kernel
"""


def head(a, name):
    a.raw(".text")
    a.raw(f".globl {name}")
    a.raw(".p2align 8")
    a.raw(f".type {name},@function")
    a.label(name)


MFMA = "v_mfma_f32_32x32x16_bf16"
DIAG_OFF = 0x2000000
STAMP_NAMES = []


class Stamps:
    def __init__(self, a, opt, kidx, sW):
        self.a, self.on, self.k, self.n, self.sW = a, opt.get("stamp"), kidx, 0, sW
        self.names = []

    def __call__(self, name):
        if not self.on:
            return
        if self.n == 0:
            for i in range(16):
                self.a(f"s_mov_b32 s{60+2*i}, 0")
        if name in self.names:
            r = 60 + 2 * self.names.index(name)
        else:
            r = 60 + 2 * self.n
            self.n += 1
            self.names.append(name)
        assert self.n <= 16
        self.a(f"s_memrealtime s[{r}:{r+1}]" if self.on != 3 else f"s_memtime s[{r}:{r+1}]")
        self.a("s_waitcnt lgkmcnt(0)") if self.on == 2 else None

    def flush(self):
        if not self.on:
            return
        a = self.a
        a("s_waitcnt vmcnt(0) lgkmcnt(0)")
        self("end")
        a("s_load_dwordx2 s[96:97], s[0:1], 72")
        a("s_waitcnt lgkmcnt(0)")
        a(f"s_add_u32 s92, s96, {DIAG_OFF + self.k * 0x100000}")
        a("s_addc_u32 s93, s97, 0")
        a("s_mov_b32 s94, 0x100000")
        a("s_mov_b32 s95, 0x00020000")
        a("s_lshl_b32 s3, s2, 4")
        a(f"s_add_u32 s3, s3, s{self.sW}")
        a("s_lshl_b32 s3, s3, 6")
        a("v_mov_b32 v1, s3")
        for i in range(self.n):
            a(f"v_mov_b32 v2, s{60+2*i}")
            a(f"buffer_store_dword v2, v1, s[92:95], 0 offen offset:{4*i}")
        STAMP_NAMES.append(list(self.names))


def k1(opt):
    a = A()
    name = "qkv_kernel"
    head(a, name)
    sW, sBR, sMB, sNB, sXg, sWg, sXl, sWl, sT, sSC = 24, 25, 26, 27, 28, 29, 30, 31, 32, 33
    sQo, sKo, sVo = 34, 35, 36
    X, W, WS = 12, 16, 20
    a("s_cmp_ge_u32 s2, 256")
    a("s_cbranch_scc1 qkv_end")
    st_ = Stamps(a, opt, 0, sW)
    st_("start")
    a("s_load_dwordx4 s[4:7], s[0:1], 0")
    a("s_load_dwordx4 s[40:43], s[0:1], 32")
    a("s_load_dwordx2 s[8:9], s[0:1], 72")
    a(f"v_lshrrev_b32 v1, 6, v0")
    a(f"v_and_b32 v0, 63, v0")
    a(f"v_readfirstlane_b32 s{sW}, v1")
    a(f"s_and_b32 s3, s2, 7")
    a(f"s_lshr_b32 s{sT}, s2, 3")
    a(f"s_lshr_b32 s{sBR}, s3, 2")
    a(f"s_and_b32 s{sMB}, s3, 1")
    a(f"s_lshl_b32 s{sMB}, s{sMB}, 3")
    a(f"s_and_b32 s10, s{sT}, 7")
    a(f"s_add_u32 s{sMB}, s{sMB}, s10")
    a(f"s_bfe_u32 s{sNB}, s3, 0x10001")
    a(f"s_lshl_b32 s{sNB}, s{sNB}, 2")
    a(f"s_lshr_b32 s10, s{sT}, 3")
    a(f"s_add_u32 s{sNB}, s{sNB}, s10")
    vx0, vx1, vwq, vwk = 2, 3, 4, 5
    a(f"v_lshrrev_b32 v1, 3, v0")
    a(f"v_lshrrev_b32 v6, 4, v0")
    a(f"v_and_b32 v7, 7, v0")
    a(f"v_xor_b32 v8, v7, v6")
    a(f"v_lshlrev_b32 v8, 4, v8")
    a(f"v_lshl_add_u32 v{vx0}, v1, 10, v8")
    a(f"v_xor_b32 v{vx1}, 64, v{vx0}")
    a(f"v_and_b32 v8, 1, v6")
    a(f"v_lshlrev_b32 v8, 2, v8")
    a(f"v_xor_b32 v8, v7, v8")
    a(f"v_lshlrev_b32 v8, 4, v8")
    a(f"v_mul_u32_u24 v9, 3072, v1")
    a(f"v_add_u32 v{vwq}, v8, v9")
    a(f"v_xor_b32 v{vwk}, 32, v{vwq}")
    a(f"s_lshl_b32 s{sXg}, s{sMB}, 17")
    a(f"s_lshl_b32 s10, s{sW}, 15")
    a(f"s_add_u32 s{sXg}, s{sXg}, s10")
    a(f"s_mul_i32 s{sWg}, s{sW}, {16*3072}")
    a(f"s_lshl_b32 s10, s{sNB}, 7")
    a(f"s_add_u32 s{sWg}, s{sWg}, s10")
    a(f"s_lshl_b32 s{sXl}, s{sW}, 12")
    a(f"s_mul_i32 s{sWl}, s{sW}, 6144")
    a(f"s_add_u32 s{sWl}, s{sWl}, 65536")
    a("s_waitcnt lgkmcnt(0)")
    a(f"s_cmp_eq_u32 s{sBR}, 0")
    a(f"s_cselect_b32 s{X}, s4, s40")
    a(f"s_cselect_b32 s{X+1}, s5, s41")
    a(f"s_cselect_b32 s{W}, s6, s42")
    a(f"s_cselect_b32 s{W+1}, s7, s43")
    a(f"s_cselect_b32 s{sSC}, 1.0, {f32(0.25*LOG2E)}")
    a(f"s_mov_b32 s{X+2}, 0x200000")
    a(f"s_mov_b32 s{X+3}, 0x00020000")
    a(f"s_mov_b32 s{W+2}, 0x180000")
    a(f"s_mov_b32 s{W+3}, 0x00020000")

    def dma(stage):
        slot = stage % 4
        G = []
        for j in range(4):
            G.append(f"s_add_u32 m0, s{sXl}, {slot*16384 + j*1024}\n"
                     f"s_add_u32 s{sT}, s{sXg}, {j*8192 + stage*128}\n"
                     f"buffer_load_dwordx4 v{vx1 if j % 2 else vx0}, s[{X}:{X+3}], s{sT} offen lds")
        for g in range(3):
            for q in range(2):
                G.append(f"s_add_u32 m0, s{sWl}, {slot*24576 + (2*g+q)*1024}\n"
                         f"s_add_u32 s{sT}, s{sWg}, {(stage*64 + 8*q)*3072 + g*1024}\n"
                         f"buffer_load_dwordx4 v{vwk if g == 1 else vwq}, s[{W}:{W+3}], s{sT} offen lds")
        return G

    st_("kernarg")
    for st in range(4):
        for g in dma(st):
            a(g)
    st_("issued")
    a(f"s_lshl_b32 s10, s{sBR}, 23")
    a(f"s_add_u32 s8, s8, s10")
    a(f"s_addc_u32 s9, s9, 0")
    srd(a, WS, 8, 9, BR_STRIDE)
    ax = [10, 11, 12, 13]
    aw = [[14, 15], [16, 17], [18, 19]]
    vQ, vK, vV = 20, 21, 22
    a(f"s_and_b32 s10, s{sW}, 1")
    a(f"s_lshr_b32 s11, s{sW}, 1")
    a(f"v_and_b32 v1, 31, v0")
    a(f"v_lshrrev_b32 v6, 5, v0")
    a(f"v_bfe_u32 v7, v0, 1, 3")
    a(f"v_xor_b32 v7, v7, v6")
    a(f"s_lshl_b32 s3, s10, 13")
    a(f"v_lshl_add_u32 v8, v1, 7, s3")
    for ks in range(4):
        a(f"v_xor_b32 v9, {2*ks}, v7")
        a(f"v_lshl_add_u32 v{ax[ks]}, v9, 4, v8")
    a(f"v_bfe_u32 v7, v0, 4, 1")
    a(f"v_bfe_u32 v8, v0, 2, 2")
    a(f"v_lshl_add_u32 v9, v6, 3, v8")
    a(f"v_lshlrev_b32 v9, 7, v9")
    a(f"v_and_b32 v23, 3, v0")
    a(f"v_lshl_add_u32 v9, v23, 3, v9")
    a(f"v_add_u32 v9, 65536, v9")
    a(f"v_and_b32 v8, 2, v8")
    a(f"v_xor_b32 v8, v8, v7")
    a(f"s_lshl_b32 s3, s11, 1")
    a(f"v_xor_b32 v8, s3, v8")
    a(f"v_lshl_add_u32 v23, v8, 5, v9")
    a(f"v_add_u32 v{aw[2][0]}, 4096, v23")
    a(f"v_lshl_add_u32 v{aw[0][0]}, v7, 11, v23")
    a(f"v_xor_b32 v{aw[1][0]}, 32, v{aw[0][0]}")
    for t in range(3):
        a(f"v_add_u32 v{aw[t][1]}, 49152, v{aw[t][0]}")
    a(f"v_lshlrev_b32 v{vQ}, 4, v0")
    a(f"v_and_b32 v7, 0x33, v0")
    a(f"v_bfe_u32 v8, v0, 2, 1")
    a(f"v_lshl_or_b32 v7, v8, 3, v7")
    a(f"v_bfe_u32 v8, v0, 3, 1")
    a(f"v_lshl_or_b32 v7, v8, 2, v7")
    a(f"v_lshlrev_b32 v{vK}, 4, v7")
    a(f"v_and_b32 v7, 15, v0")
    a(f"v_lshlrev_b32 v7, 4, v7")
    a(f"v_lshl_add_u32 v7, v6, 9, v7")
    a(f"v_bfe_u32 v8, v0, 4, 1")
    a(f"v_lshl_add_u32 v{vV}, v8, 17, v7")
    a(f"s_lshl_b32 s{sMB}, s{sMB}, 2")
    a(f"s_lshl_b32 s10, s10, 1")
    a(f"s_add_u32 s{sMB}, s{sMB}, s10")
    a(f"s_lshl_b32 s{sNB}, s{sNB}, 2")
    a(f"s_add_u32 s{sNB}, s{sNB}, s3")
    a(f"s_lshl_b32 s{sQo}, s{sNB}, 16")
    a(f"s_lshl_b32 s10, s{sMB}, 10")
    a(f"s_add_u32 s{sQo}, s{sQo}, s10")
    a(f"s_lshl_b32 s{sKo}, s{sQo}, 1")
    a(f"s_add_u32 s{sKo}, s{sKo}, {KV_OFF}")

    FX = [[24, 28], [44, 48]]
    FW = [[32, 36, 40], [52, 56, 60]]
    ACC = [[64 + 16 * (3 * rbi + t) for t in range(3)] for rbi in range(2)]

    def reads(step):
        st, ks = divmod(step, 4)
        slot, s = st % 4, step % 2
        R = []
        for rbi in range(2):
            R.append(f"ds_read_b128 {vr(FX[s][rbi],4)}, v{ax[ks]} offset:{slot*16384 + rbi*4096}")
        for t in range(3):
            for half in range(2):
                R.append(f"ds_read_b64_tr_b16 {vr(FW[s][t]+2*half,2)}, v{aw[t][slot//2]} "
                         f"offset:{(slot%2)*24576 + ks*6144 + half*512}")
        return [R[0], R[2], R[3], R[4], R[5], R[1], R[6], R[7]]

    def mfmas(step):
        s = step % 2
        M = []
        for t, rbi in [(0, 0), (1, 0), (0, 1), (1, 1), (2, 0), (2, 1)]:
            d = vr(ACC[rbi][t], 16)
            c = d if step else "0"
            x, w = vr(FX[s][rbi], 4), vr(FW[s][t], 4)
            M.append(f"{MFMA} {d}, {w}, {x}, {c}" if t < 2 else f"{MFMA} {d}, {x}, {w}, {c}")
        return M

    vm = {0: 30, 1: 20, 2: 20, 3: 20, 4: 20, 5: 20, 6: 10, 7: 0}
    a(f"s_waitcnt vmcnt({vm[0]})")
    a("s_barrier")
    st_("stage0")
    for r in reads(0):
        a(r)
    pend = []
    for step in range(32):
        a("s_waitcnt lgkmcnt(0)")
        nxt = step + 1
        R = []
        if nxt < 32:
            if nxt % 4 == 0:
                st = nxt // 4
                a(f"s_waitcnt vmcnt({vm[st]})")
                a("s_barrier")
                st_(f"stage{st}")
                if st + 3 <= 7:
                    pend = dma(st + 3)
            R = reads(nxt)
        M = mfmas(step)
        for i, m in enumerate(M):
            a(m)
            for _ in range(2):
                if R:
                    a(R.pop(0))
            if i >= 2 and pend and (i < 5 or nxt % 4 == 0):
                a(pend.pop(0))
        if nxt % 4 == 3:
            assert not pend, (step, len(pend))
    st_("mainend")
    T = 24
    k = 0
    for t, rbi in [(0, 0), (1, 0), (0, 1), (1, 1)]:
        d = ACC[rbi][t]
        q, kk = T + 8 * (k % 4), T + 8 * (k % 4) + 4
        k += 1
        for i in range(8):
            a(f"v_mul_f32 v{d+i}, s{sSC}, v{d+i}")
        for i in range(4):
            a(f"v_cvt_pk_bf16_f32 v{q+i}, v{d+2*i}, v{d+2*i+1}")
        a(f"s_add_u32 s{sT}, s{sQo}, {t*65536 + rbi*1024}")
        a(f"buffer_store_dwordx4 {vr(q,4)}, v{vQ}, s[{WS}:{WS+3}], s{sT} offen")
        for i in range(4):
            a(f"v_cvt_pk_bf16_f32 v{kk+i}, v{d+8+2*i}, v{d+8+2*i+1}")
        a(f"s_add_u32 s{sT}, s{sKo}, {t*131072 + rbi*2048}")
        a(f"buffer_store_dwordx4 {vr(kk,4)}, v{vK}, s[{WS}:{WS+3}], s{sT} offen")
    for rbi in range(2):
        d = ACC[rbi][2]
        a(f"s_add_u32 s{sT}, s{sKo}, {rbi*2048 + 1024}")
        for tt in range(2):
            for i in range(4):
                a(f"v_cvt_pk_bf16_f32 v{d+8*tt+i}, v{d+8*tt+2*i}, v{d+8*tt+2*i+1}")
            a(f"buffer_store_dwordx4 {vr(d+8*tt,4)}, v{vV}, s[{WS}:{WS+3}], s{sT} offen offset:{tt*256}")
    st_("stored")
    st_.flush()
    a.label("qkv_end")
    a("s_endpgm")
    return name, a, descriptor(name, 160), f"grid=(256,1,1) block=(256,1,1) lds=163840"


def k2(opt):
    a = A()
    name = "attn_kernel"
    head(a, name)
    sW, sH, sQB, sRB, sT, sFB, sT2 = 24, 25, 26, 27, 28, 29, 30
    sMK = 32
    sC0 = 34
    KV, WS, PH, DB = 12, 16, 20, 36
    SCR = 131072
    vL16, vKp, vLa, vIdx, vL8 = 1, 2, 3, 4, 5
    vLim = vKp
    Q, C, S, O, Kf, Vf, PQ = 8, 12, [28, 44], 60, [76, 80], [84, 92], 100
    TMP = 108
    a("s_cmp_ge_u32 s2, 256")
    a("s_cbranch_scc1 attn_end")
    st_ = Stamps(a, opt, 1, sW)
    st_("start")
    a("s_load_dwordx2 s[4:5], s[0:1], 16")
    a("s_load_dwordx4 s[8:11], s[0:1], 64")
    a(f"v_lshrrev_b32 v1, 6, v0")
    a(f"v_and_b32 v0, 63, v0")
    a(f"v_readfirstlane_b32 s{sW}, v1")
    a(f"s_and_b32 s3, s2, 7")
    a(f"s_lshl_b32 s3, s3, 2")
    a(f"s_bfe_u32 s{sH}, s2, 0x20003")
    a(f"s_add_u32 s{sH}, s{sH}, s3")
    a(f"s_lshr_b32 s{sQB}, s2, 5")
    a(f"s_lshl_b32 s{sRB}, s{sQB}, 3")
    a(f"s_add_u32 s{sRB}, s{sRB}, s{sW}")
    a(f"s_mov_b32 s{sMK}, 0x0000ffff")
    a(f"s_mov_b32 s{sMK+1}, 0x0000ffff")
    a(f"s_mov_b32 s{sFB}, 0")
    a(f"v_lshlrev_b32 v{vL16}, 4, v0")
    a(f"v_lshlrev_b32 v{vL8}, 3, v0")
    a(f"v_and_b32 v7, 0x33, v0")
    a(f"v_bfe_u32 v6, v0, 2, 1")
    a(f"v_lshl_or_b32 v7, v6, 3, v7")
    a(f"v_bfe_u32 v6, v0, 3, 1")
    a(f"v_lshl_or_b32 v7, v6, 2, v7")
    a(f"v_lshlrev_b32 v{vKp}, 4, v7")
    a(f"v_and_b32 v6, 15, v0")
    a(f"v_lshlrev_b32 v6, 1, v6")
    a(f"v_lshrrev_b32 v7, 5, v0")
    a(f"v_lshl_add_u32 v6, v7, 7, v6")
    for i in range(16):
        a(f"v_mov_b32 v{Vf[0]+i}, 0x3f803f80")
    a("s_waitcnt lgkmcnt(0)")
    srd(a, PH, 4, 5, 16384)
    srd(a, WS, 10, 11, WS_BYTES)
    srd(a, DB, 8, 9, 256)
    a(f"s_lshl_b32 s3, s{sH}, 17")
    a(f"s_add_u32 s3, s3, {BR_STRIDE + KV_OFF}")
    a(f"s_add_u32 s{KV}, s10, s3")
    a(f"s_addc_u32 s{KV+1}, s11, 0")
    a(f"s_mov_b32 s{KV+2}, 131072")
    a(f"s_mov_b32 s{KV+3}, 0x00020000")
    WPL = TMP
    WP = 116
    KA, QA = Kf[0], Kf[1]
    VA = Vf[0]
    a(f"s_lshl_b32 s{sT}, s{sH}, 9")
    for j in range(8):
        d = 8 * (j // 4) + j % 4
        a(f"buffer_load_ushort v{WPL+j}, v6, s[{PH}:{PH+3}], s{sT} offen offset:{d*32}")
    a(f"s_lshl_b32 s3, s{sH}, 6")
    a(f"s_add_u32 s3, s3, s{sRB}")
    a(f"s_lshl_b32 s{sT}, s3, 11")
    a(f"s_add_u32 s{sT}, s{sT}, {KV_OFF}")
    a(f"buffer_load_dwordx4 {vr(KA,4)}, v{vKp}, s[{WS}:{WS+3}], s{sT} offen")
    a(f"s_mov_b64 exec, s[{sMK}:{sMK+1}]")
    a(f"buffer_load_dwordx4 {vr(VA,4)}, v{vL16}, s[{WS}:{WS+3}], s{sT} offen offset:1024")
    a(f"buffer_load_dwordx4 {vr(VA+4,4)}, v{vL16}, s[{WS}:{WS+3}], s{sT} offen offset:1280")
    a(f"s_mov_b64 exec, -1")
    a(f"s_lshl_b32 s{sT}, s3, 10")
    a(f"buffer_load_dwordx4 {vr(QA,4)}, v{vL16}, s[{WS}:{WS+3}], s{sT} offen")
    a(f"s_add_u32 s{sT}, s{sT}, {BR_STRIDE}")
    a(f"buffer_load_dwordx4 {vr(Q,4)}, v{vL16}, s[{WS}:{WS+3}], s{sT} offen")
    a(f"s_lshl_b32 m0, s{sW}, 10")
    for c in range(16):
        a(f"buffer_load_dwordx4 v{vL16}, s[{KV}:{KV+3}], m0 offen lds")
        if c < 15:
            a(f"s_add_u32 m0, m0, 8192")
    st_("issued")
    a(f"v_mov_b32 v{vIdx}, 0xdddddddd")
    a(f"v_mov_b32 v{vLim}, 0x7e800000")
    a(f"v_mov_b32 v{vLa}, v{vL16}")
    ID = O
    a(f"v_and_b32 v6, 31, v0")
    a(f"v_lshlrev_b32 v7, 2, v7")
    a(f"v_sub_u32 v6, v6, v7")
    a(f"v_mov_b32 v7, 0x3f80")
    for t in range(2):
        for rr, base in enumerate([0, 2, 8, 10]):
            r = ID + 4 * t + rr
            a(f"v_subrev_u32 v{r}, {16*t+base}, v6")
            a(f"v_cmp_gt_u32 s[{sC0}:{sC0+1}], 2, v{r}")
            a(f"v_lshlrev_b32 v{r}, 4, v{r}")
            a(f"v_lshlrev_b32 v{r}, v{r}, v7")
            a(f"v_cndmask_b32 v{r}, 0, v{r}, s[{sC0}:{sC0+1}]")
    vC = 7
    a(f"v_mov_b32 v{vC}, {f32(LOG2E)}")
    a("s_waitcnt vmcnt(21)")
    for i in range(4):
        a(f"v_lshl_or_b32 v{WP+i}, v{WPL+2*i+1}, 16, v{WPL+2*i}")

    def phi(src, T, E, out):
        x, y, z = TMP, TMP + 1, TMP + 2
        a(f"{MFMA} {vr(T,16)}, {vr(WP,4)}, {vr(src,4)}, 0")
        if opt.get("round_p"):
            for i in range(4):
                a(f"v_cvt_pk_bf16_f32 v{T+8+i}, v{T+2*i}, v{T+2*i+1}")
            for i in range(4):
                a(f"v_lshlrev_b32 v{T+2*i}, 16, v{T+8+i}")
                a(f"v_and_b32 v{T+2*i+1}, 0xffff0000, v{T+8+i}")
        a(f"v_max3_f32 v{x}, v{T}, v{T+1}, v{T+2}")
        a(f"v_max3_f32 v{y}, -v{T}, -v{T+1}, -v{T+2}")
        a(f"v_max3_f32 v{x}, v{x}, v{T+3}, v{T+4}")
        a(f"v_max3_f32 v{y}, v{y}, -v{T+3}, -v{T+4}")
        a(f"v_max3_f32 v{x}, v{x}, v{T+5}, v{T+6}")
        a(f"v_max3_f32 v{y}, v{y}, -v{T+5}, -v{T+6}")
        a(f"v_max_f32 v{x}, v{x}, v{T+7}")
        a(f"v_max_f32_e64 v{y}, v{y}, -v{T+7}")
        a(f"v_permlane32_swap_b32 v{x}, v{y}")
        a(f"v_max_f32 v{x}, v{x}, v{y}")
        a(f"v_mul_f32 v{x}, v{vC}, v{x}")
        a(f"v_mov_b32 v{y}, v{x}")
        a(f"v_permlane32_swap_b32 v{x}, v{y}")
        for i in range(8):
            a(f"v_fma_f32 v{E+i}, v{T+i}, v{vC}, -v{x}")
            a(f"v_fma_f32 v{E+8+i}, -v{T+i}, v{vC}, -v{y}")
        for i in range(16):
            a(f"v_exp_f32 v{E+i}, v{E+i}")
        a(f"v_add_f32 v{T}, v{E}, v{E+1}")
        a(f"v_add_f32 v{T+1}, v{E+2}, v{E+3}")
        a(f"v_add_f32 v{T+2}, v{E+4}, v{E+5}")
        a(f"v_add_f32 v{T+3}, v{E+6}, v{E+7}")
        a(f"v_add_f32 v{T+4}, v{E+8}, v{E+9}")
        a(f"v_add_f32 v{T+5}, v{E+10}, v{E+11}")
        a(f"v_add_f32 v{T+6}, v{E+12}, v{E+13}")
        a(f"v_add_f32 v{T+7}, v{E+14}, v{E+15}")
        a(f"v_add_f32 v{T}, v{T}, v{T+1}")
        a(f"v_add_f32 v{T+2}, v{T+2}, v{T+3}")
        a(f"v_add_f32 v{T+4}, v{T+4}, v{T+5}")
        a(f"v_add_f32 v{T+6}, v{T+6}, v{T+7}")
        a(f"v_add_f32 v{x}, v{T}, v{T+2}")
        a(f"v_add_f32 v{y}, v{T+4}, v{T+6}")
        a(f"v_permlane32_swap_b32 v{x}, v{y}")
        a(f"v_add_f32 v{x}, v{x}, v{y}")
        a(f"v_rcp_f32 v{x}, v{x}")
        a(f"v_mov_b32 v{y}, v{x}")
        a(f"v_permlane32_swap_b32 v{x}, v{y}")
        for i in range(8):
            a(f"v_mul_f32 v{E+i}, v{E+i}, v{x}")
            a(f"v_mul_f32 v{E+8+i}, v{E+8+i}, v{y}")
        for i in range(8):
            a(f"v_cvt_pk_bf16_f32 v{out+i}, v{E+2*i}, v{E+2*i+1}")

    a("s_waitcnt vmcnt(20)")
    st_("kA")
    PK = 120
    phi(KA, S[0], S[1], PK)
    a(f"{MFMA} {vr(C,16)}, {vr(PK,4)}, {vr(ID,4)}, 0")
    a(f"{MFMA} {vr(C,16)}, {vr(PK+4,4)}, {vr(ID+4,4)}, {vr(C,16)}")
    a("s_waitcnt vmcnt(17)")
    phi(QA, S[0], S[1], PQ)
    for i in range(8):
        a(f"v_cvt_pk_bf16_f32 v{PK+i}, v{C+2*i}, v{C+2*i+1}")
    a(f"{MFMA} {vr(C,16)}, {vr(PK,4)}, {vr(VA,4)}, 0")
    a(f"{MFMA} {vr(C,16)}, {vr(PK+4,4)}, {vr(VA+4,4)}, {vr(C,16)}")
    a(f"s_lshl_b32 s3, s{sW}, 12")
    a(f"s_add_u32 s3, s3, {SCR}")
    a(f"v_add_u32 v6, s3, v{vL8}")
    for p in range(8):
        a(f"ds_write_b64 v6, {vr(C+2*p,2)} offset:{p*512}")
    SEG1 = opt.get("seg1", 16)
    rounds = (SEG1 + 2 + 3) // 4
    st_("Adone")
    a(f"s_waitcnt vmcnt({16-rounds}) lgkmcnt(0)")
    a("s_barrier")
    st_("bar1")
    a(f"s_lshl_b32 s3, s{sW}, 9")
    a(f"s_add_u32 s3, s3, {SCR}")
    a(f"v_add_u32 v6, s3, v{vL8}")
    for p in range(8):
        a(f"ds_read_b64 {vr(S[1]+2*p,2)}, v6 offset:{p*4096}")
    a(f"ds_read_b128 {vr(Kf[0],4)}, v{vLa}")
    a(f"s_lshl_b32 s{sT2}, s{sH}, 15")
    a(f"s_lshl_b32 s3, s{sW}, 9")
    a(f"s_add_u32 s{sT2}, s{sT2}, s3")
    a(f"s_add_u32 s{sT2}, s{sT2}, {PART_OFF}")
    a(f"s_lshl_b32 s3, s{sQB}, 12")
    a(f"s_add_u32 s{sT}, s{sT2}, s3")
    a("s_waitcnt lgkmcnt(0)")
    a(f"{MFMA} {vr(S[0],16)}, {vr(Kf[0],4)}, {vr(Q,4)}, 0")
    s1 = S[1]
    for step in (8, 4, 2):
        for i in range(step):
            a(f"v_add_f32 v{s1+i}, v{s1+i}, v{s1+i+step}")
    a(f"buffer_store_dwordx2 {vr(s1,2)}, v{vL8}, s[{WS}:{WS+3}], s{sT} offen sc1")
    x, y = TMP, TMP + 1
    s0 = S[0]
    a(f"v_max3_f32 v{x}, v{s0}, v{s0+1}, v{s0+2}")
    a(f"v_max3_f32 v{y}, v{s0+3}, v{s0+4}, v{s0+5}")
    for i in range(2):
        a(f"v_max3_f32 v{x}, v{x}, v{s0+6+4*i}, v{s0+7+4*i}")
        a(f"v_max3_f32 v{y}, v{y}, v{s0+8+4*i}, v{s0+9+4*i}")
    a(f"v_max3_f32 v{x}, v{x}, v{s0+14}, v{s0+15}")
    a(f"v_max_f32 v{x}, v{x}, v{y}")
    a(f"v_add_f32 v{x}, {f32(M_OFF)}, v{x}")
    a.label("attn_restart")
    a(f"v_mov_b32 v{y}, v{x}")
    a(f"v_permlane32_swap_b32 v{x}, v{y}")
    a(f"v_max_f32 v{x}, v{x}, v{y}")
    for i in range(16):
        a(f"v_sub_f32 v{C+i}, 0, v{x}")
    a(f"ds_read_b128 {vr(Kf[0],4)}, v{vLa}")
    a(f"ds_read_b128 {vr(Kf[1],4)}, v{vLa} offset:2048")
    a(f"s_mov_b64 exec, s[{sMK}:{sMK+1}]")
    a(f"ds_read_b128 {vr(Vf[0],4)}, v{vLa} offset:1024")
    a(f"ds_read_b128 {vr(Vf[0]+4,4)}, v{vLa} offset:1280")
    a(f"s_mov_b64 exec, -1")
    for i in range(16):
        a(f"v_mov_b32 v{O+i}, 0")
    a("s_waitcnt lgkmcnt(3)")
    a(f"{MFMA} {vr(S[0],16)}, {vr(Kf[0],4)}, {vr(Q,4)}, {vr(C,16)}")
    a.nop(10)

    SM = "v_smfmac_f32_32x32x32_bf16"
    base = [0]

    def lds_off(t):
        return (t - base[0]) * 2048

    def tile(t):
        b, nb = t % 2, 1 - t % 2
        e = [f"v_exp_f32 v{S[b]+i}, v{S[b]+i}" for i in range(16)]
        a("s_waitcnt lgkmcnt(0)")
        a(e[0]); a(e[1])
        if t > 0:
            a(f"{SM} {vr(O,16)}, {vr(Vf[nb]+4,4)}, {vr(S[nb]+8,8)}, v{vIdx}")
        if t + 1 < 64:
            a(f"s_mov_b64 exec, s[{sMK}:{sMK+1}]")
            a(f"ds_read_b128 {vr(Vf[nb],4)}, v{vLa} offset:{lds_off(t+1)+1024}")
            a(f"ds_read_b128 {vr(Vf[nb]+4,4)}, v{vLa} offset:{lds_off(t+1)+1280}")
            a(f"s_mov_b64 exec, -1")
        for i in range(2, 6):
            a(e[i])
        if t + 1 < 64:
            a(f"{MFMA} {vr(S[nb],16)}, {vr(Kf[nb],4)}, {vr(Q,4)}, {vr(C,16)}")
        if t + 2 == 32:
            a(f"v_add_u32 v{vLa}, 65536, v{vLa}")
            base[0] = 32
        if t + 2 < 64:
            a(f"ds_read_b128 {vr(Kf[b],4)}, v{vLa} offset:{lds_off(t+2)}")
        for i in range(6, 11):
            a(e[i])
        a(f"{SM} {vr(O,16)}, {vr(Vf[b],4)}, {vr(S[b],8)}, v{vIdx}")
        for i in range(11, 16):
            a(e[i])

    def job_barrier2():
        a(f"s_cmp_lg_u32 s{sFB}, 0")
        a("s_cbranch_scc1 attn_j2_skip")
        a("s_waitcnt vmcnt(0)")
        a("s_barrier")
        a(f"s_cmp_lg_u32 s{sW}, 0")
        a("s_cbranch_scc1 attn_j2_skip")
        a(f"s_lshl_b32 s3, s{sH}, 2")
        a(f"v_mov_b32 v{TMP}, 1")
        a(f"v_mov_b32 v{TMP+1}, s3")
        a("s_mov_b64 exec, 1")
        a(f"buffer_atomic_add v{TMP}, v{TMP+1}, s[{DB}:{DB+3}], 0 offen sc1")
        a("s_mov_b64 exec, -1")
        a.label("attn_j2_skip")

    def job_gather():
        a(f"s_cmp_lg_u32 s{sFB}, 0")
        a("s_cbranch_scc1 attn_j3_skip")
        a(f"s_lshl_b32 s3, s{sH}, 2")
        a(f"v_mov_b32 v{TMP+1}, s3")
        a.label("attn_poll")
        a(f"buffer_load_dword v{TMP}, v{TMP+1}, s[{DB}:{DB+3}], 0 offen sc1")
        a("s_waitcnt vmcnt(0)")
        a(f"v_readfirstlane_b32 s3, v{TMP}")
        a("s_cmp_ge_u32 s3, 8")
        a("s_cbranch_scc1 attn_polled")
        a("s_branch attn_poll")
        a.label("attn_polled")
        for qb in range(8):
            a(f"s_add_u32 s3, s{sT2}, {qb*4096}")
            a(f"buffer_load_dwordx2 {vr(TMP+2*qb,2)}, v{vL8}, s[{WS}:{WS+3}], s3 offen sc1")
        a(f"s_lshr_b32 s3, s{sW}, 2")
        a(f"s_lshl_b32 s3, s3, 10")
        a(f"s_and_b32 s{sT}, s{sW}, 3")
        a(f"s_lshl_b32 s{sT}, s{sT}, 2")
        a(f"s_add_u32 s3, s3, s{sT}")
        a(f"s_add_u32 s3, s3, {SCR}")
        a(f"v_add_u32 v6, s3, v{vL16}")
        a("s_waitcnt vmcnt(0)")
        for step in (8, 4, 2):
            for i in range(step):
                a(f"v_add_f32 v{TMP+i}, v{TMP+i}, v{TMP+i+step}")
        a(f"v_cvt_pk_bf16_f32 v{TMP}, v{TMP}, v{TMP+1}")
        a(f"ds_write_b32 v6, v{TMP}")
        a.label("attn_j3_skip")

    def job_oa():
        a(f"s_cmp_lg_u32 s{sFB}, 0")
        a("s_cbranch_scc1 attn_j4_skip")
        a("s_waitcnt lgkmcnt(0)")
        a("s_barrier")
        a(f"v_add_u32 v6, {SCR}, v{vL16}")
        a(f"ds_read_b128 {vr(TMP,4)}, v6")
        a(f"ds_read_b128 {vr(TMP+4,4)}, v6 offset:1024")
        a(f"s_lshl_b32 s3, s{sRB}, 5")
        a(f"s_add_u32 s3, s3, s{sH}")
        a(f"s_lshl_b32 s3, s3, 10")
        a(f"s_add_u32 s3, s3, {O_OFF}")
        a("s_waitcnt lgkmcnt(0)")
        ND = 116
        a(f"{MFMA} {vr(ND,16)}, {vr(TMP,4)}, {vr(PQ,4)}, 0")
        a(f"{MFMA} {vr(ND,16)}, {vr(TMP+4,4)}, {vr(PQ+4,4)}, {vr(ND,16)}")
        a(f"v_add_f32 v{ND+8}, {f32(1e-6)}, v{ND+8}")
        a(f"v_rcp_f32 v{ND+8}, v{ND+8}")
        for i in range(8):
            a(f"v_mul_f32 v{ND+i}, v{ND+i}, v{ND+8}")
        for i in range(4):
            a(f"v_cvt_pk_bf16_f32 v{TMP+i}, v{ND+2*i}, v{ND+2*i+1}")
        a(f"buffer_store_dwordx4 {vr(TMP,4)}, v{vL16}, s[{WS}:{WS+3}], s3 offen")
        a.label("attn_j4_skip")

    plan = opt.get("plan") or {0: ("p3",), 10: ("p2",), 14: ("p1",), SEG1: ("b2", "p3"), 36: ("g",), 40: ("p2",),
                               48: ("p1",), 52: ("oa", "p3"), 60: ("p2",), 62: ("p1",)}
    for t in range(64):
        if t in (0, 8, 16, 24, 32, 40, 48, 56):
            st_(f"t{t}")
        for act in plan.get(t, ()):
            if act[0] == "p":
                a(f"s_setprio {act[1]}")
            elif act == "b2":
                job_barrier2()
            elif act == "g":
                job_gather()
            elif act == "oa":
                job_oa()
        tile(t)
    a(f"s_lshl_b32 s3, s{sRB}, 5")
    a(f"s_add_u32 s3, s3, s{sH}")
    a(f"{SM} {vr(O,16)}, {vr(Vf[1]+4,4)}, {vr(S[1]+8,8)}, v{vIdx}")
    a(f"s_lshl_b32 s3, s3, 10")
    a(f"s_add_u32 s3, s3, {BR_STRIDE + O_OFF}")
    a(f"s_cmp_lg_u32 s{sFB}, 0")
    a("s_cbranch_scc1 attn_final")
    a(f"v_add_f32_e64 v{x}, abs(v{O}), abs(v{O+1})")
    a(f"v_add_f32_e64 v{y}, abs(v{O+2}), abs(v{O+3})")
    a(f"v_add_f32_e64 v{x}, v{x}, abs(v{O+4})")
    a(f"v_add_f32_e64 v{y}, v{y}, abs(v{O+5})")
    a(f"v_add_f32_e64 v{x}, v{x}, abs(v{O+6})")
    a(f"v_add_f32_e64 v{y}, v{y}, abs(v{O+7})")
    a(f"v_add_f32 v{x}, v{x}, v{O+8}")
    a(f"v_add_f32 v{x}, v{x}, v{y}")
    a(f"v_cmp_nle_f32 vcc, v{x}, v{vLim}")
    a("s_cbranch_vccz attn_final")
    a(f"s_mov_b32 s{sFB}, 1")
    a(f"v_mov_b32 v{vLa}, v{vL16}")
    a(f"v_mov_b32 v{x}, 0xff800000")
    a(f"s_mov_b32 s3, 64")
    a.label("attn_maxloop")
    a(f"ds_read_b128 {vr(Kf[0],4)}, v{vLa}")
    a(f"v_add_u32 v{vLa}, 2048, v{vLa}")
    a("s_waitcnt lgkmcnt(0)")
    a(f"{MFMA} {vr(S[0],16)}, {vr(Kf[0],4)}, {vr(Q,4)}, 0")
    for i in range(8):
        a(f"v_max3_f32 v{x}, v{x}, v{s0+2*i}, v{s0+2*i+1}")
    a("s_sub_u32 s3, s3, 1")
    a("s_cmp_lg_u32 s3, 0")
    a("s_cbranch_scc1 attn_maxloop")
    a(f"v_mov_b32 v{vLa}, v{vL16}")
    a("s_branch attn_restart")
    a.label("attn_final")
    st_("t64")
    a.nop(12)
    a(f"v_rcp_f32 v{x}, v{O+8}")
    for i in range(8):
        a(f"v_mul_f32 v{O+i}, v{O+i}, v{x}")
    for i in range(4):
        a(f"v_cvt_pk_bf16_f32 v{TMP+4+i}, v{O+2*i}, v{O+2*i+1}")
    a(f"buffer_store_dwordx4 {vr(TMP+4,4)}, v{vL16}, s[{WS}:{WS+3}], s3 offen")
    st_.flush()
    a.label("attn_end")
    a("s_endpgm")
    return name, a, descriptor(name, 136), f"grid=(256,1,1) block=(512,1,1) lds=163840"


def k3(opt):
    a = A()
    name = "proj_kernel"
    head(a, name)
    sW, sBR, sRB, sNB, sT, sOg, sWg = 24, 25, 26, 27, 28, 29, 30
    W, WS, OUT = 12, 16, 20
    a("s_cmp_ge_u32 s2, 256")
    a("s_cbranch_scc1 proj_end")
    st_ = Stamps(a, opt, 2, sW)
    st_("start")
    a("s_load_dwordx2 s[4:5], s[0:1], 24")
    a("s_load_dwordx4 s[8:11], s[0:1], 48")
    a("s_load_dwordx2 s[6:7], s[0:1], 72")
    a(f"v_lshrrev_b32 v1, 6, v0")
    a(f"v_and_b32 v0, 63, v0")
    a(f"v_readfirstlane_b32 s{sW}, v1")
    a(f"s_bfe_u32 s{sBR}, s2, 0x10002")
    a(f"s_and_b32 s{sRB}, s2, 3")
    a(f"s_lshl_b32 s{sRB}, s{sRB}, 2")
    a(f"s_bfe_u32 s3, s2, 0x20003")
    a(f"s_add_u32 s{sRB}, s{sRB}, s3")
    a(f"s_lshl_b32 s{sRB}, s{sRB}, 2")
    a(f"s_add_u32 s{sRB}, s{sRB}, s{sW}")
    a(f"s_lshr_b32 s{sNB}, s2, 5")
    vL16, vw, aw0, aw1, vO = 1, 2, 3, 4, 5
    a(f"v_lshlrev_b32 v{vL16}, 4, v0")
    a(f"v_lshrrev_b32 v6, 3, v0")
    a(f"v_bfe_u32 v7, v0, 4, 1")
    a(f"v_lshlrev_b32 v8, 1, v7")
    a(f"v_and_b32 v9, 7, v0")
    a(f"v_xor_b32 v8, v8, v9")
    a(f"v_lshlrev_b32 v8, 4, v8")
    a(f"v_lshl_add_u32 v{vw}, v6, 10, v8")
    a(f"s_lshl_b32 s{sOg}, s{sRB}, 15")
    a(f"s_lshl_b32 s3, s{sBR}, 23")
    a(f"s_add_u32 s{sOg}, s{sOg}, s3")
    a(f"s_add_u32 s{sOg}, s{sOg}, {O_OFF}")
    a(f"s_lshl_b32 s{sWg}, s{sW}, 13")
    a(f"s_lshl_b32 s3, s{sNB}, 7")
    a(f"s_add_u32 s{sWg}, s{sWg}, s3")
    a(f"s_lshl_b32 m0, s{sW}, 10")
    a("s_waitcnt lgkmcnt(0)")
    a(f"s_cmp_eq_u32 s{sBR}, 0")
    a(f"s_cselect_b32 s{W}, s4, s8")
    a(f"s_cselect_b32 s{W+1}, s5, s9")
    a(f"s_mov_b32 s{W+2}, 0x80000")
    a(f"s_mov_b32 s{W+3}, 0x00020000")
    srd(a, WS, 6, 7, WS_BYTES)
    OF = 64
    for c in range(16):
        a(f"buffer_load_dwordx4 v{vw}, s[{W}:{W+3}], s{sWg} offen lds")
        a(f"buffer_load_dwordx4 {vr(OF+8*c,4)}, v{vL16}, s[{WS}:{WS+3}], s{sOg} offen offset:{(c%2)*2048}")
        a(f"buffer_load_dwordx4 {vr(OF+8*c+4,4)}, v{vL16}, s[{WS}:{WS+3}], s{sOg} offen offset:{(c%2)*2048+1024}")
        if c < 15:
            a(f"s_add_u32 m0, m0, 4096")
            a(f"s_add_u32 s{sWg}, s{sWg}, 32768")
            if c % 2:
                a(f"s_add_u32 s{sOg}, s{sOg}, 4096")
    st_("issued")
    srd(a, OUT, 10, 11, 0x400000)
    a(f"v_lshrrev_b32 v6, 5, v0")
    a(f"v_bfe_u32 v8, v0, 2, 2")
    a(f"v_lshl_add_u32 v9, v6, 2, v8")
    a(f"v_lshlrev_b32 v9, 7, v9")
    a(f"v_lshl_add_u32 v9, v7, 4, v9")
    a(f"v_bfe_u32 v10, v0, 1, 1")
    a(f"v_lshl_add_u32 v9, v10, 3, v9")
    a(f"v_and_b32 v10, 1, v0")
    a(f"v_lshl_add_u32 v9, v10, 6, v9")
    a(f"v_lshrrev_b32 v8, 1, v8")
    a(f"v_lshl_add_u32 v{aw0}, v8, 5, v9")
    a(f"v_xor_b32 v{aw1}, 32, v{aw0}")
    a(f"v_and_b32 v8, 31, v0")
    a(f"v_lshlrev_b32 v8, 11, v8")
    a(f"v_lshl_add_u32 v{vO}, v6, 6, v8")
    a(f"s_lshl_b32 s{sT}, s{sRB}, 16")
    a(f"s_lshl_b32 s3, s{sBR}, 10")
    a(f"s_add_u32 s{sT}, s{sT}, s3")
    a(f"s_lshl_b32 s3, s{sNB}, 7")
    a(f"s_add_u32 s{sT}, s{sT}, s3")
    FW = [[12, 16], [20, 24]]
    ACC = [32, 48]

    def reads(h):
        s = h % 2
        return [f"ds_read_b64_tr_b16 {vr(FW[s][T]+2*half,2)}, v{aw1 if T else aw0} offset:{h*2048+half*1024}"
                for T in range(2) for half in range(2)]

    a("s_waitcnt vmcnt(36)")
    a("s_barrier")
    st_("ph0")
    for r in reads(0):
        a(r)
    for h in range(32):
        a("s_waitcnt lgkmcnt(0)")
        R = []
        if h + 1 < 32:
            if (h + 1) % 8 == 0:
                a(f"s_waitcnt vmcnt({36 - 12*((h+1)//8)})")
                a("s_barrier")
                st_(f"ph{(h+1)//8}")
            R = reads(h + 1)
        for T in range(2):
            d = vr(ACC[T], 16)
            a(f"{MFMA} {d}, {vr(FW[h%2][T],4)}, {vr(OF+4*h,4)}, {d if h else 0}")
            for _ in range(2):
                if R:
                    a(R.pop(0))
    st_("mainend")
    for T in range(2):
        for i in range(8):
            a(f"v_cvt_pk_bf16_f32 v{OF+8*T+i}, v{ACC[T]+2*i}, v{ACC[T]+2*i+1}")
        for q in range(2):
            a(f"buffer_store_dwordx4 {vr(OF+8*T+4*q,4)}, v{vO}, s[{OUT}:{OUT+3}], s{sT} offen offset:{T*32+q*16}")
    st_("stored")
    st_.flush()
    a.label("proj_end")
    a("s_endpgm")
    return name, a, descriptor(name, 192), f"grid=(256,1,1) block=(256,1,1) lds=65536"


def build(opt):
    ref = open(f"cdna_kernels/{NAME}.s.ref").read().split("\n")
    hdr = [l for l in ref if l.startswith(";")]
    hdr = hdr[:[i for i, l in enumerate(hdr) if "Override launch" in l][0]]
    ks = [k(opt) for k in (k1, k2, k3)]
    out = "\n".join(hdr) + "\n"
    for extra in range(opt.get("pre_launch", 0)):
        out += f"; @launch kernel=nop_kernel grid=(256,1,1) block=(64,1,1) lds=0\n"
    for name, a, desc, launch in ks:
        out += f"; @launch kernel={name} {launch}\n"
    if opt.get("diag"):
        out += f"; @launch kernel=diag_kernel grid=(1,1,1) block=(64,1,1) lds=0\n"
    for extra in range(opt.get("extra_launch", 0)):
        out += f"; @launch kernel=nop_kernel grid=(256,1,1) block=(64,1,1) lds=0\n"
    out += '.amdgcn_target "amdgcn-amd-amdhsa--gfx950"\n'
    for name, a, desc, launch in ks:
        out += a.text() + desc
        if opt.get("verbose"):
            print(name, "lines", len(a.L), "nops inserted:", [(r, t) for _, r, t in a.inserted], file=sys.stderr)
    if opt.get("diag"):
        kA, iA, kB, iB, mult = opt["diag"]
        a = A()
        head(a, "diag_kernel")
        a("s_cmp_ge_u32 s2, 1")
        a("s_cbranch_scc1 diag_end")
        a("s_load_dwordx2 s[4:5], s[0:1], 72")
        a("s_waitcnt lgkmcnt(0)")
        a(f"s_add_u32 s6, s4, {DIAG_OFF + kA*0x100000 + 4*iA}")
        a("s_addc_u32 s7, s5, 0")
        a(f"s_add_u32 s8, s4, {DIAG_OFF + kB*0x100000 + 4*iB}")
        a("s_addc_u32 s9, s5, 0")
        a("s_load_dword s10, s[6:7], 0")
        a("s_load_dword s11, s[8:9], 0")
        a("s_memrealtime s[12:13]")
        a("s_waitcnt lgkmcnt(0)")
        if kB == 9:
            a("s_mov_b32 s11, s12")
        a("s_sub_u32 s10, s11, s10")
        a("s_min_u32 s10, s10, 20000")
        a(f"s_mul_i32 s10, s10, {mult}")
        a.label("diag_loop")
        a("s_memrealtime s[14:15]")
        a("s_waitcnt lgkmcnt(0)")
        a("s_sub_u32 s14, s14, s12")
        a("s_cmp_lt_u32 s14, s10")
        a("s_cbranch_scc1 diag_loop")
        a.label("diag_end")
        a("s_endpgm")
        out += a.text() + descriptor("diag_kernel", 8)
    if opt.get("extra_launch") or opt.get("pre_launch"):
        a = A()
        head(a, "nop_kernel")
        if opt.get("diag"):
            a("s_mov_b32 s24, 0")
            a("s_cmp_ge_u32 s2, 256")
            a("s_cbranch_scc1 nop_end")
            st_ = Stamps(a, opt, 3, 24)
            st_.flush()
            a.label("nop_end")
        a("s_endpgm")
        out += a.text() + descriptor("nop_kernel", 8)
    return out


if __name__ == "__main__":
    opt = {"verbose": True}
    path = f"cdna_kernels/{NAME}.s"
    for arg in sys.argv[1:]:
        if "=" in arg:
            k, v = arg.split("=", 1)
            opt[k] = eval(v)
        else:
            path = arg
    open(path, "w").write(build(opt))
    if opt.get("stamp"):
        open(path + ".names", "w").write(repr(STAMP_NAMES))
```

```python
import sys
from asmlib import A
from gen import f32, vr, srd, descriptor, head, Stamps, STAMP_NAMES, MFMA, NAME, LOG2E, DIAG_OFF

MB = 1 << 20
Q_OFF, KV_OFF, OA_OFF, OB_OFF, PART_OFF, KVF_OFF, FL_OFF = 0, 2 * MB, 6 * MB, 8 * MB, 10 * MB, 12 * MB, 13 * MB
FB_OFF = FL_OFF
FKV_OFF = FL_OFF + 0x10000
FK2_OFF = FL_OFF + 0x20000
FOA_OFF = FL_OFF + 0x30000
FOB_OFF = FL_OFF + 0x50000
EP_OFF = FL_OFF + 0x90000
WS_BYTES = 14 * MB
SCR = 131072
SM = "v_smfmac_f32_32x32x32_bf16"


def zipl(*ls):
    out = []
    n = max(len(l) for l in ls)
    for i in range(n):
        for l in ls:
            if i < len(l):
                out.append(l[i])
    return out


def fused(opt):
    a = A()
    name = NAME + "_kernel"
    M_OFF = opt.get("moff", 80.0)
    head(a, name)
    sW, sBR, sMB, sNB, sH, sQB, sT, sT2 = 24, 25, 26, 27, 28, 29, 30, 31
    sMK, sC0, DB = 32, 34, 36
    sXg, sWg, sXl, sWl = 40, 41, 42, 43
    sQo, sKo = 40, 41
    X, W, WS, KV, PH, WO, OUT = 12, 16, 20, 44, 48, 52, 56
    sN, sFB, sRBo, sNBo, sSpin = 98, 100, 101, 11, 10
    uid = [0]
    vL16, vLa, vIdx, vLim, vF = 1, 2, 3, 4, 5
    Q, C, S, O, Kf, Vf = 8, 12, [28, 44], 60, [76, 80], [84, 92]
    TMP = 100
    WOF = 128
    PQ = 128

    def ws():
        return f"s[{WS}:{WS+3}]"

    def poll(n, soff):
        uid[0] += 1
        L = f"poll{uid[0]}"
        a(f"v_and_b32 v{vF}, {n-1}, v0")
        a(f"v_lshlrev_b32 v{vF}, 7, v{vF}")
        a(f"s_mov_b32 s{sSpin}, 0x200000")
        a.label(L)
        a(f"buffer_load_dwordx2 v[6:7], v{vF}, {ws()}, {soff} offen sc1")
        a("s_waitcnt vmcnt(0)")
        a(f"v_cmp_ne_u64 vcc, s[{sN}:{sN+1}], v[6:7]")
        a(f"s_cbranch_vccz {L}_ok")
        a(f"s_sub_u32 s{sSpin}, s{sSpin}, 1")
        a(f"s_cbranch_scc0 {L}")
        a.label(L + "_ok")

    def flag(soff):
        a(f"v_mov_b32 v6, s{sN}")
        a(f"v_mov_b32 v7, s{sN+1}")
        a("s_mov_b64 exec, 1")
        a(f"buffer_store_dwordx2 v[6:7], off, {ws()}, {soff} sc1")
        a("s_mov_b64 exec, -1")

    def get_nonce():
        uid[0] += 1
        L = f"nonce{uid[0]}"
        a(f"s_mov_b32 s{sSpin}, 0x200000")
        a.label(L)
        a(f"buffer_load_dwordx2 v[6:7], off, s[{DB}:{DB+3}], 0 sc1")
        a("s_waitcnt vmcnt(0)")
        a(f"v_readfirstlane_b32 s{sN}, v6")
        a(f"v_readfirstlane_b32 s{sN+1}, v7")
        a(f"s_min_u32 s3, s{sN}, s{sN+1}")
        a(f"s_cmp_lg_u32 s3, 0")
        a(f"s_cbranch_scc1 {L}_ok")
        a(f"s_sub_u32 s{sSpin}, s{sSpin}, 1")
        a(f"s_cbranch_scc0 {L}")
        a.label(L + "_ok")

    a("s_cmp_ge_u32 s2, 256")
    a("s_cbranch_scc1 k_end")
    st_ = Stamps(a, opt, 0, sW)
    st_("start")
    a("s_load_dwordx4 s[4:7], s[0:1], 0")
    a("s_load_dwordx4 s[40:43], s[0:1], 32")
    a("s_load_dwordx4 s[44:47], s[0:1], 16")
    a("s_load_dwordx4 s[56:59], s[0:1], 48")
    a("s_load_dwordx4 s[36:39], s[0:1], 64")
    a(f"v_lshrrev_b32 v1, 6, v0")
    a(f"v_and_b32 v0, 63, v0")
    a(f"v_readfirstlane_b32 s{sW}, v1")
    a(f"s_and_b32 s3, s2, 7")
    a(f"s_lshr_b32 s{sT}, s2, 3")
    a(f"s_and_b32 s{sBR}, s{sT}, 1")
    a(f"s_lshr_b32 s{sT2}, s{sT}, 1")
    a(f"s_and_b32 s{sMB}, s3, 3")
    a(f"s_lshl_b32 s{sMB}, s{sMB}, 2")
    a(f"s_and_b32 s10, s{sT2}, 3")
    a(f"s_add_u32 s{sMB}, s{sMB}, s10")
    a(f"s_and_b32 s{sNB}, s3, 4")
    a(f"s_lshr_b32 s10, s{sT2}, 2")
    a(f"s_add_u32 s{sNB}, s{sNB}, s10")
    if opt.get("bx"):
        a(f"s_cmp_eq_u32 s{sBR}, 0")
        a(f"s_cselect_b32 s{sMB}, s{sMB}, s{sT2}")
        a(f"s_cselect_b32 s{sNB}, s{sNB}, s3")
    a(f"s_and_b32 s10, s{sT}, 7")
    a(f"s_lshl_b32 s{sRBo}, s3, 3")
    a(f"s_add_u32 s{sRBo}, s{sRBo}, s10")
    a(f"s_lshr_b32 s{sNBo}, s{sT}, 3")
    a(f"s_lshl_b32 s{sH}, s3, 2")
    a(f"s_and_b32 s10, s{sT}, 3")
    a(f"s_add_u32 s{sH}, s{sH}, s10")
    a(f"s_lshr_b32 s{sQB}, s{sT}, 2")
    a(f"v_lshlrev_b32 v{vL16}, 4, v0")
    a(f"s_cmp_ge_u32 s{sW}, 4")
    a("s_cbranch_scc0 comp_setup")

    vx0, vx1, vwq, vwk = 8, 9, 10, 11
    a(f"v_lshrrev_b32 v12, 3, v0")
    a(f"v_lshrrev_b32 v6, 4, v0")
    a(f"v_and_b32 v7, 7, v0")
    a(f"v_xor_b32 v13, v7, v6")
    a(f"v_lshlrev_b32 v13, 4, v13")
    a(f"v_lshl_add_u32 v{vx0}, v12, 10, v13")
    a(f"v_xor_b32 v{vx1}, 64, v{vx0}")
    a(f"v_and_b32 v13, 1, v6")
    a(f"v_lshlrev_b32 v13, 2, v13")
    a(f"v_xor_b32 v13, v7, v13")
    a(f"v_lshlrev_b32 v13, 4, v13")
    a(f"v_mul_u32_u24 v14, 3072, v12")
    a(f"v_add_u32 v{vwq}, v13, v14")
    a(f"v_xor_b32 v{vwk}, 32, v{vwq}")
    a(f"s_sub_u32 s{sT2}, s{sW}, 4")
    a("s_waitcnt lgkmcnt(0)")
    a(f"s_cmp_eq_u32 s{sBR}, 0")
    a(f"s_cselect_b32 s{X}, s4, s40")
    a(f"s_cselect_b32 s{X+1}, s5, s41")
    a(f"s_cselect_b32 s{W}, s6, s42")
    a(f"s_cselect_b32 s{W+1}, s7, s43")
    a(f"s_mov_b32 s{X+2}, 0x200000")
    a(f"s_mov_b32 s{X+3}, 0x00020000")
    a(f"s_mov_b32 s{W+2}, 0x180000")
    a(f"s_mov_b32 s{W+3}, 0x00020000")
    a(f"s_lshl_b32 s{sXg}, s{sMB}, 17")
    a(f"s_lshl_b32 s10, s{sT2}, 15")
    a(f"s_add_u32 s{sXg}, s{sXg}, s10")
    a(f"s_mul_i32 s{sWg}, s{sT2}, {16*3072}")
    a(f"s_lshl_b32 s10, s{sNB}, 7")
    a(f"s_add_u32 s{sWg}, s{sWg}, s10")
    a(f"s_lshl_b32 s{sXl}, s{sT2}, 12")
    a(f"s_mul_i32 s{sWl}, s{sT2}, 6144")
    a(f"s_add_u32 s{sWl}, s{sWl}, 65536")

    def dma(stage):
        slot = stage % 4
        for j in range(4):
            a(f"s_add_u32 m0, s{sXl}, {slot*16384 + j*1024}")
            a(f"s_add_u32 s{sT}, s{sXg}, {j*8192 + stage*128}")
            a(f"buffer_load_dwordx4 v{vx1 if j % 2 else vx0}, s[{X}:{X+3}], s{sT} offen lds")
        for g in range(3):
            for q in range(2):
                a(f"s_add_u32 m0, s{sWl}, {slot*24576 + (2*g+q)*1024}")
                a(f"s_add_u32 s{sT}, s{sWg}, {(stage*64 + 8*q)*3072 + g*1024}")
                a(f"buffer_load_dwordx4 v{vwk if g == 1 else vwq}, s[{W}:{W+3}], s{sT} offen lds")

    def common_srds():
        srd(a, WS, 38, 39, WS_BYTES)
        srd(a, PH, 44, 45, 16384)
        a(f"s_cmp_ge_u32 s{sW}, 4")
        a(f"s_cselect_b32 s{WO}, s56, s46")
        a(f"s_cselect_b32 s{WO+1}, s57, s47")
        a(f"s_mov_b32 s{WO+2}, 0x80000")
        a(f"s_mov_b32 s{WO+3}, 0x00020000")
        srd(a, OUT, 58, 59, 0x400000)
        a(f"s_lshl_b32 s3, s{sH}, 17")
        a(f"s_add_u32 s3, s3, {KV_OFF}")
        a(f"s_add_u32 s{KV}, s38, s3")
        a(f"s_addc_u32 s{KV+1}, s39, 0")
        a(f"s_mov_b32 s{KV+2}, 131072")
        a(f"s_mov_b32 s{KV+3}, 0x00020000")
        a(f"s_mov_b32 s{DB+2}, 256")
        a(f"s_mov_b32 s{DB+3}, 0x00020000")
        a(f"s_mov_b32 s{sMK}, 0x0000ffff")
        a(f"s_mov_b32 s{sMK+1}, 0x0000ffff")
        a(f"s_mov_b32 s{sFB}, 0")
        a(f"v_mov_b32 v{vIdx}, 0xdddddddd")
        a(f"v_mov_b32 v{vLim}, 0x7e800000")
        a(f"v_mov_b32 v{vLa}, v{vL16}")

    AH = opt.get("ahead", 2)
    for s in range(AH):
        dma(s)
    common_srds()
    for s in range(8):
        left = min(7, s + AH - 1) - s
        a(f"s_waitcnt vmcnt({10*left})")
        a("s_barrier")
        if s + AH <= 7:
            dma(s + AH)
    a("s_barrier")
    get_nonce()
    a(f"s_lshr_b32 s3, s{sH}, 1")
    a(f"s_lshl_b32 s3, s3, 8")
    a(f"s_lshl_b32 s3, s3, 4")
    a(f"s_add_u32 s{sT}, s3, {FB_OFF}")
    poll(32, f"s{sT}")
    st_("polled")
    a(f"s_lshl_b32 s3, s{sH}, 6")
    a(f"s_lshl_b32 s{sT}, s{sQB}, 3")
    a(f"s_add_u32 s3, s3, s{sT}")
    a(f"s_lshl_b32 s3, s3, 10")
    a(f"s_lshl_b32 s{sT}, s{sT2}, 11")
    a(f"s_add_u32 s3, s3, s{sT}")
    a(f"s_add_u32 m0, s{sT}, {SCR}")
    a(f"buffer_load_dwordx4 v{vL16}, {ws()}, s3 offen sc1 lds")
    a(f"buffer_load_dwordx4 v{vL16}, {ws()}, s3 offen offset:1024 sc1 lds")
    a(f"s_lshl_b32 m0, s{sT2}, 10")
    for c in range(8):
        a(f"buffer_load_dwordx4 v{vL16}, s[{KV}:{KV+3}], m0 offen sc1 lds")
        if c < 7:
            a(f"s_add_u32 m0, m0, 4096")
    for i in range(16):
        a(f"v_mov_b32 v{Vf[0]+i}, 0x3f803f80")
    a("s_waitcnt vmcnt(0)")
    a("s_branch bar_x")

    a.label("comp_setup")
    ax = [48, 49, 50, 51]
    aw = [[52, 53], [54, 55], [56, 57]]
    vK, vV = 58, 59
    if opt.get("pf", 1):
        a("s_getpc_b64 s[8:9]")
        a.label("pc_here")
        a(f"s_sub_u32 s8, s8, pc_here-{name}")
        a("s_subb_u32 s9, s9, 0")
        a(f"s_lshr_b32 s3, s2, 3")
        a(f"s_lshl_b32 s3, s3, 3")
        a(f"v_and_b32 v6, 7, v0")
        a(f"v_add_u32 v6, s3, v6")
        a(f"v_lshlrev_b32 v6, 7, v6")
        a(f"v_min_u32 v6, k_end-{name}, v6")
        a(f"s_cmp_lg_u32 s{sW}, 1")
        a("s_cbranch_scc1 no_pf")
        a(f"global_load_dword v99, v6, s[8:9]")
        a.label("no_pf")
    a("s_waitcnt lgkmcnt(0)")
    common_srds()
    a(f"s_or_b32 s3, s2, s{sW}")
    a("s_cmp_lg_u32 s3, 0")
    a("s_cbranch_scc1 no_epoch")
    a(f"s_mov_b32 s3, {EP_OFF}")
    a(f"buffer_load_dwordx2 v[6:7], off, {ws()}, s3 sc1")
    a("s_waitcnt vmcnt(0)")
    a("v_add_u32 v6, 1, v6")
    a("v_max_u32 v6, 1, v6")
    a("v_or_b32 v7, 0x80000000, v7")
    a("s_mov_b64 exec, 1")
    a(f"buffer_store_dwordx2 v[6:7], off, s[{DB}:{DB+3}], 0 sc1")
    a(f"buffer_store_dwordx2 v[6:7], off, {ws()}, s3 sc1")
    a("s_mov_b64 exec, -1")
    a.label("no_epoch")
    a(f"s_and_b32 s4, s{sW}, 1")
    a(f"s_lshr_b32 s5, s{sW}, 1")
    a(f"v_and_b32 v8, 31, v0")
    a(f"v_lshrrev_b32 v6, 5, v0")
    a(f"v_bfe_u32 v7, v0, 1, 3")
    a(f"v_xor_b32 v7, v7, v6")
    a(f"s_lshl_b32 s3, s4, 13")
    a(f"v_lshl_add_u32 v8, v8, 7, s3")
    for ks in range(4):
        a(f"v_xor_b32 v9, {2*ks}, v7")
        a(f"v_lshl_add_u32 v{ax[ks]}, v9, 4, v8")
    a(f"v_bfe_u32 v7, v0, 4, 1")
    a(f"v_bfe_u32 v8, v0, 2, 2")
    a(f"v_lshl_add_u32 v9, v6, 3, v8")
    a(f"v_lshlrev_b32 v9, 7, v9")
    a(f"v_and_b32 v10, 3, v0")
    a(f"v_lshl_add_u32 v9, v10, 3, v9")
    a(f"v_add_u32 v9, 65536, v9")
    a(f"v_and_b32 v8, 2, v8")
    a(f"v_xor_b32 v8, v8, v7")
    a(f"s_lshl_b32 s3, s5, 1")
    a(f"v_xor_b32 v8, s3, v8")
    a(f"v_lshl_add_u32 v10, v8, 5, v9")
    a(f"v_add_u32 v{aw[2][0]}, 4096, v10")
    a(f"v_lshl_add_u32 v{aw[0][0]}, v7, 11, v10")
    a(f"v_xor_b32 v{aw[1][0]}, 32, v{aw[0][0]}")
    for t in range(3):
        a(f"v_add_u32 v{aw[t][1]}, 49152, v{aw[t][0]}")
    a(f"s_lshl_b32 s6, s{sMB}, 2")
    a(f"s_lshl_b32 s10, s4, 1")
    a(f"s_add_u32 s6, s6, s10")
    a(f"s_lshl_b32 s7, s{sNB}, 2")
    a(f"s_add_u32 s7, s7, s3")
    WPL, WP, ID, vC, vM, vOne = 64, 100, 108, 116, 117, 118
    a(f"v_and_b32 v7, 0x33, v0")
    a(f"v_bfe_u32 v8, v0, 2, 1")
    a(f"v_lshl_or_b32 v7, v8, 3, v7")
    a(f"v_bfe_u32 v8, v0, 3, 1")
    a(f"v_lshl_or_b32 v7, v8, 2, v7")
    a(f"v_lshlrev_b32 v{vK}, 4, v7")
    a(f"v_and_b32 v7, 15, v0")
    a(f"v_lshlrev_b32 v7, 4, v7")
    a(f"v_lshl_add_u32 v7, v6, 9, v7")
    a(f"v_bfe_u32 v8, v0, 4, 1")
    a(f"v_lshl_add_u32 v{vV}, v8, 17, v7")
    a(f"s_cmp_eq_u32 s{sBR}, 0")
    a("s_cbranch_scc0 setup_b")
    a(f"v_and_b32 v7, 15, v0")
    a(f"v_lshlrev_b32 v7, 1, v7")
    a(f"v_lshl_add_u32 v7, v6, 7, v7")
    a(f"s_lshl_b32 s{sT}, s7, 9")
    for t in range(2):
        for j in range(8):
            d = 8 * (j // 4) + j % 4
            a(f"buffer_load_ushort v{WPL+8*t+j}, v7, s[{PH}:{PH+3}], s{sT} offen offset:{t*512 + d*32}")
    a(f"v_and_b32 v8, 31, v0")
    a(f"v_lshlrev_b32 v9, 2, v6")
    a(f"v_sub_u32 v8, v8, v9")
    a(f"v_mov_b32 v9, 0x3f80")
    for t in range(2):
        for rr, base in enumerate([0, 2, 8, 10]):
            r = ID + 4 * t + rr
            a(f"v_subrev_u32 v{r}, {16*t+base}, v8")
            a(f"v_cmp_gt_u32 s[{sC0}:{sC0+1}], 2, v{r}")
            a(f"v_lshlrev_b32 v{r}, 4, v{r}")
            a(f"v_lshlrev_b32 v{r}, v{r}, v9")
            a(f"v_cndmask_b32 v{r}, 0, v{r}, s[{sC0}:{sC0+1}]")
    a(f"v_mov_b32 v{vC}, {f32(LOG2E)}")
    a(f"v_bfe_u32 v{vM}, v0, 4, 1")
    a(f"v_add_u32 v{vM}, -1, v{vM}")
    a(f"v_mov_b32 v{vOne}, 0x3f803f80")
    a("s_waitcnt vmcnt(0)")
    for i in range(8):
        a(f"v_lshl_or_b32 v{WP+i}, v{WPL+2*i+1}, 16, v{WPL+2*i}")
    a("s_branch gemm")
    a.label("setup_b")
    a(f"s_lshl_b32 s{sQo}, s7, 16")
    a(f"s_lshl_b32 s10, s6, 10")
    a(f"s_add_u32 s{sQo}, s{sQo}, s10")
    a(f"s_lshl_b32 s{sKo}, s{sQo}, 1")
    a(f"s_add_u32 s{sKo}, s{sKo}, {KV_OFF}")
    a(f"v_mov_b32 v{vC}, {f32(0.25*LOG2E)}")
    a.label("gemm")

    FX = [[8, 12], [28, 32]]
    FW = [[16, 20, 24], [36, 40, 44]]
    ACC = [[160 + 16 * (3 * rbi + t) for t in range(3)] for rbi in range(2)]

    def reads(step):
        st, ks = divmod(step, 4)
        slot, s = st % 4, step % 2
        R = []
        for rbi in range(2):
            R.append(f"ds_read_b128 {vr(FX[s][rbi],4)}, v{ax[ks]} offset:{slot*16384 + rbi*4096}")
        for t in range(3):
            for half in range(2):
                R.append(f"ds_read_b64_tr_b16 {vr(FW[s][t]+2*half,2)}, v{aw[t][slot//2]} "
                         f"offset:{(slot%2)*24576 + ks*6144 + half*512}")
        return [R[0], R[2], R[3], R[4], R[5], R[1], R[6], R[7]]

    def mfmas(step):
        s = step % 2
        M = []
        for t, rbi in [(0, 0), (1, 0), (0, 1), (1, 1), (2, 0), (2, 1)]:
            d = vr(ACC[rbi][t], 16)
            c = d if step else "0"
            x, w = vr(FX[s][rbi], 4), vr(FW[s][t], 4)
            M.append(f"{MFMA} {d}, {w}, {x}, {c}" if t < 2 else f"{MFMA} {d}, {x}, {w}, {c}")
        return M

    a("s_barrier")
    st_("stage0")
    for r in reads(0):
        a(r)
    for step in range(32):
        a("s_waitcnt lgkmcnt(0)")
        nxt = step + 1
        R = []
        if nxt % 4 == 0:
            a("s_barrier")
            if nxt in opt.get("gst", (16,)):
                st_(f"stage{nxt//4}")
        if nxt < 32:
            R = reads(nxt)
        if step == 24:
            a(f"buffer_load_dwordx2 v[6:7], off, s[{DB}:{DB+3}], 0 sc1")
        for i, m in enumerate(mfmas(step)):
            a(m)
            for _ in range(2):
                if R:
                    a(R.pop(0))
    st_("gemmend")
    a("s_waitcnt vmcnt(0)")
    a(f"v_readfirstlane_b32 s{sN}, v6")
    a(f"v_readfirstlane_b32 s{sN+1}, v7")
    a(f"s_min_u32 s3, s{sN}, s{sN+1}")
    a(f"s_cmp_lg_u32 s3, 0")
    a("s_cbranch_scc1 have_tag")
    get_nonce()
    a.label("have_tag")
    a(f"s_cmp_eq_u32 s{sBR}, 0")
    a("s_cbranch_scc1 epi_a")
    T = 8
    k = 0
    for t, rbi in [(0, 0), (1, 0), (0, 1), (1, 1)]:
        d = ACC[rbi][t]
        q, kk = T + 8 * k, T + 8 * k + 4
        k += 1
        for i in range(4):
            a(f"v_cvt_pk_bf16_f32 v{kk+i}, v{d+8+2*i}, v{d+8+2*i+1}")
        a(f"s_add_u32 s{sT}, s{sKo}, {t*131072 + rbi*2048}")
        a(f"buffer_store_dwordx4 {vr(kk,4)}, v{vK}, {ws()}, s{sT} offen sc1")
        for i in range(8):
            a(f"v_mul_f32 v{d+i}, v{vC}, v{d+i}")
        for i in range(4):
            a(f"v_cvt_pk_bf16_f32 v{q+i}, v{d+2*i}, v{d+2*i+1}")
        a(f"s_add_u32 s{sT}, s{sQo}, {t*65536 + rbi*1024}")
        a(f"buffer_store_dwordx4 {vr(q,4)}, v{vL16}, {ws()}, s{sT} offen sc1")
    for rbi in range(2):
        d = ACC[rbi][2]
        a(f"s_add_u32 s{sT}, s{sKo}, {rbi*2048 + 1024}")
        for tt in range(2):
            for i in range(4):
                a(f"v_cvt_pk_bf16_f32 v{d+8*tt+i}, v{d+8*tt+2*i}, v{d+8*tt+2*i+1}")
            a(f"buffer_store_dwordx4 {vr(d+8*tt,4)}, v{vV}, {ws()}, s{sT} offen offset:{tt*256} sc1")
    a(f"s_lshl_b32 s3, s7, 7")
    a(f"s_lshl_b32 s{sT}, s6, 2")
    a(f"s_add_u32 s3, s3, s{sT}")
    a(f"s_lshl_b32 s3, s3, 4")
    a(f"s_add_u32 s{sT}, s3, {FB_OFF}")
    st_("issued")
    a("s_waitcnt vmcnt(0)")
    flag(f"s{sT}")
    for i in range(16):
        a(f"v_mov_b32 v{Vf[0]+i}, 0x3f803f80")
    a("s_branch bar_x")

    a.label("epi_a")

    def phi(src, wp, T, E, x, y, out):
        L = []
        L.append(f"{MFMA} {vr(T,16)}, {vr(wp,4)}, {vr(src,4)}, 0")
        L += [None] * 5
        L.append(f"v_max3_f32 v{x}, v{T}, v{T+1}, v{T+2}")
        L.append(f"v_max3_f32 v{y}, -v{T}, -v{T+1}, -v{T+2}")
        L.append(f"v_max3_f32 v{x}, v{x}, v{T+3}, v{T+4}")
        L.append(f"v_max3_f32 v{y}, v{y}, -v{T+3}, -v{T+4}")
        L.append(f"v_max3_f32 v{x}, v{x}, v{T+5}, v{T+6}")
        L.append(f"v_max3_f32 v{y}, v{y}, -v{T+5}, -v{T+6}")
        L.append(f"v_max_f32 v{x}, v{x}, v{T+7}")
        L.append(f"v_max_f32_e64 v{y}, v{y}, -v{T+7}")
        L.append(f"v_permlane32_swap_b32 v{x}, v{y}")
        L.append(f"v_max_f32 v{x}, v{x}, v{y}")
        L.append(f"v_mul_f32 v{x}, v{vC}, v{x}")
        L.append(f"v_mov_b32 v{y}, v{x}")
        L.append(f"v_permlane32_swap_b32 v{x}, v{y}")
        for i in range(8):
            L.append(f"v_fma_f32 v{E+i}, v{T+i}, v{vC}, -v{x}")
            L.append(f"v_fma_f32 v{T+8+i}, -v{T+i}, v{vC}, -v{y}")
        for i in range(8):
            L.append(f"v_exp_f32 v{E+i}, v{E+i}")
        for i in range(8):
            L.append(f"v_exp_f32 v{T+8+i}, v{T+8+i}")
        for b, o in ((E, T), (T + 8, T + 4)):
            for i in range(2):
                L.append(f"v_pk_add_f32 {vr(o+2*i,2)}, {vr(b+4*i,2)}, {vr(b+4*i+2,2)}")
        L.append(f"v_pk_add_f32 {vr(T,2)}, {vr(T,2)}, {vr(T+2,2)}")
        L.append(f"v_pk_add_f32 {vr(T+4,2)}, {vr(T+4,2)}, {vr(T+6,2)}")
        L.append(f"v_add_f32 v{x}, v{T}, v{T+1}")
        L.append(f"v_add_f32 v{y}, v{T+4}, v{T+5}")
        L.append(f"v_permlane32_swap_b32 v{x}, v{y}")
        L.append(f"v_add_f32 v{x}, v{x}, v{y}")
        L.append(f"v_rcp_f32 v{x}, v{x}")
        L.append(f"v_mov_b32 v{y}, v{x}")
        L.append(f"v_permlane32_swap_b32 v{x}, v{y}")
        for i in range(4):
            L.append(f"v_pk_mul_f32 {vr(E+2*i,2)}, {vr(E+2*i,2)}, {vr(x,2)} op_sel_hi:[1,0]")
            L.append(f"v_pk_mul_f32 {vr(T+8+2*i,2)}, {vr(T+8+2*i,2)}, {vr(x,2)} op_sel:[0,1]")
        for i in range(4):
            L.append(f"v_cvt_pk_bf16_f32 v{out+i}, v{E+2*i}, v{E+2*i+1}")
        for i in range(4):
            L.append(f"v_cvt_pk_bf16_f32 v{out+4+i}, v{T+8+2*i}, v{T+8+2*i+1}")
        return L

    def emit(L):
        for x in L:
            if x:
                a(x)

    for t in range(3):
        for rbi in range(2):
            d = ACC[rbi][t]
            for i in range(8):
                a(f"v_cvt_pk_bf16_f32 v{d+i}, v{d+2*i}, v{d+2*i+1}")
    TT, EE, XY = [8, 32], [24, 48], [120, 122]
    KVZ = [64, 80]
    for t in range(2):
        emit(zipl(*[phi(ACC[r][t] + 4, WP + 4 * t, TT[r], EE[r], XY[r], XY[r] + 1, ACC[r][t] + 8) for r in range(2)]))
        for r in range(2):
            a(f"{MFMA} {vr(TT[r],16)}, {vr(ACC[r][t]+8,4)}, {vr(ID,4)}, 0")
            a(f"{MFMA} {vr(TT[r],16)}, {vr(ACC[r][t]+12,4)}, {vr(ID+4,4)}, {vr(TT[r],16)}")
        for r in range(2):
            for i in range(8):
                v = ACC[r][2] + i
                a(f"v_bfi_b32 v{v+8}, v{vM}, v{v}, v{vOne}" if t == 0 else f"v_bfi_b32 v{v+8}, v{vM}, v{vOne}, v{v}")
        for r in range(2):
            for i in range(8):
                a(f"v_cvt_pk_bf16_f32 v{EE[r]+i}, v{TT[r]+2*i}, v{TT[r]+2*i+1}")
        for r in range(2):
            for tt in range(2):
                c = vr(KVZ[t], 16) if (r or tt) else "0"
                a(f"{MFMA} {vr(KVZ[t],16)}, {vr(EE[r]+4*tt,4)}, {vr(ACC[r][2]+8+4*tt,4)}, {c}")
    a(f"s_lshl_b32 s3, s{sW}, 12")
    a(f"s_add_u32 s3, s3, {SCR + 8192}")
    a(f"v_add_u32 v6, s3, v{vL16}")
    a(f"s_cmp_eq_u32 s4, 0")
    a("s_cbranch_scc1 kv_give1")
    a.nop(12)
    for q4 in range(4):
        a(f"ds_write_b128 v6, {vr(KVZ[0]+4*q4,4)} offset:{q4*1024}")
    a("s_waitcnt lgkmcnt(0)")
    for i in range(16):
        a(f"v_mov_b32 v{KVZ[0]+i}, v{KVZ[1]+i}")
    a("s_branch kv_given")
    a.label("kv_give1")
    a.nop(12)
    for q4 in range(4):
        a(f"ds_write_b128 v6, {vr(KVZ[1]+4*q4,4)} offset:{q4*1024}")
    a.label("kv_given")
    for t in range(2):
        emit(zipl(*[phi(ACC[r][t], WP + 4 * t, TT[r], EE[r], XY[r], XY[r] + 1, PQ + 16 * t + 8 * r) for r in range(2)]))
    KVP = 160
    for i in range(16):
        a(f"v_mov_b32 v{KVP+i}, v{KVZ[0]+i}")
    for i in range(16):
        a(f"v_mov_b32 v{Vf[0]+i}, 0x3f803f80")
    st_("issued")
    a("s_waitcnt lgkmcnt(0)")

    a.label("bar_x")
    a("s_barrier")
    st_("barx")
    a(f"s_lshl_b32 s3, s{sW}, 10")
    a(f"s_add_u32 s3, s3, {SCR}")
    a(f"v_add_u32 v6, s3, v{vL16}")
    a(f"ds_read_b128 {vr(Q,4)}, v6")
    a(f"ds_read_b128 {vr(Kf[0],4)}, v{vLa}")
    a(f"s_lshr_b32 s3, s{sW}, 2")
    a(f"s_or_b32 s3, s3, s{sBR}")
    a(f"s_xor_b32 s8, s3, 1")
    a(f"s_cmp_eq_u32 s{sW}, 0")
    a(f"s_cselect_b32 s9, s{sBR}, 0")
    a(f"s_cmp_eq_u32 s8, 0")
    a("s_cbranch_scc1 no_kvsum")
    a(f"s_xor_b32 s3, s{sW}, 1")
    a(f"s_lshl_b32 s3, s3, 12")
    a(f"s_add_u32 s3, s3, {SCR + 8192}")
    a(f"v_add_u32 v6, s3, v{vL16}")
    for q4 in range(4):
        a(f"ds_read_b128 {vr(KVP+16+4*q4,4)}, v6 offset:{q4*1024}")
    a(f"s_add_u32 s3, s7, s4")
    a(f"s_lshl_b32 s3, s3, 4")
    a(f"s_add_u32 s3, s3, s{sMB}")
    a(f"s_lshl_b32 s{sT2}, s3, 3")
    a(f"s_lshl_b32 s{sT2}, s{sT2}, 4")
    a(f"s_add_u32 s{sT2}, s{sT2}, {FKV_OFF}")
    a(f"s_lshl_b32 s3, s3, 12")
    a(f"s_add_u32 s{sT}, s3, {PART_OFF}")
    a("s_waitcnt lgkmcnt(0)")
    for q4 in range(4):
        for i in range(2):
            r = KVP + 4 * q4 + 2 * i
            a(f"v_pk_add_f32 {vr(r,2)}, {vr(r,2)}, {vr(r+16,2)}")
        a(f"buffer_store_dwordx4 {vr(KVP+4*q4,4)}, v{vL16}, {ws()}, s{sT} offen offset:{q4*1024} sc1")
    a.label("no_kvsum")
    a("s_waitcnt lgkmcnt(0)")
    a(f"{MFMA} {vr(S[0],16)}, {vr(Kf[0],4)}, {vr(Q,4)}, 0")
    a(f"s_lshl_b32 s3, s{sW}, 10")
    a(f"s_add_u32 m0, s3, 32768")
    x, y = TMP, TMP + 1
    s0 = S[0]
    a(f"v_max3_f32 v{x}, v{s0}, v{s0+1}, v{s0+2}")
    a(f"v_max3_f32 v{y}, v{s0+3}, v{s0+4}, v{s0+5}")
    for i in range(2):
        a(f"v_max3_f32 v{x}, v{x}, v{s0+6+4*i}, v{s0+7+4*i}")
        a(f"v_max3_f32 v{y}, v{y}, v{s0+8+4*i}, v{s0+9+4*i}")
    a(f"v_max3_f32 v{x}, v{x}, v{s0+14}, v{s0+15}")
    a(f"v_max_f32 v{x}, v{x}, v{y}")
    a(f"v_add_f32 v{x}, {f32(M_OFF)}, v{x}")
    a.label("attn_restart")
    a(f"v_mov_b32 v{y}, v{x}")
    a(f"v_permlane32_swap_b32 v{x}, v{y}")
    a(f"v_max_f32 v{x}, v{x}, v{y}")
    for i in range(16):
        a(f"v_sub_f32 v{C+i}, 0, v{x}")
    a(f"ds_read_b128 {vr(Kf[0],4)}, v{vLa}")
    a(f"ds_read_b128 {vr(Kf[1],4)}, v{vLa} offset:2048")
    a(f"s_mov_b64 exec, s[{sMK}:{sMK+1}]")
    a(f"ds_read_b128 {vr(Vf[0],4)}, v{vLa} offset:1024")
    a(f"ds_read_b128 {vr(Vf[0]+4,4)}, v{vLa} offset:1280")
    a(f"s_mov_b64 exec, -1")
    for i in range(16):
        a(f"v_mov_b32 v{O+i}, 0")
    a("s_waitcnt lgkmcnt(0)")
    a(f"{MFMA} {vr(S[0],16)}, {vr(Kf[0],4)}, {vr(Q,4)}, {vr(C,16)}")
    a.nop(10)

    base = [0]

    def lds_off(t):
        return (t - base[0]) * 2048

    def tile(t, after_wait=None):
        b, nb = t % 2, 1 - t % 2
        e = [f"v_exp_f32 v{S[b]+i}, v{S[b]+i}" for i in range(16)]
        a("s_waitcnt lgkmcnt(0)")
        if after_wait:
            after_wait()
        a(e[0]); a(e[1])
        if t > 0:
            a(f"{SM} {vr(O,16)}, {vr(Vf[nb]+4,4)}, {vr(S[nb]+8,8)}, v{vIdx}")
        if t + 1 < 64:
            a(f"s_mov_b64 exec, s[{sMK}:{sMK+1}]")
            a(f"ds_read_b128 {vr(Vf[nb],4)}, v{vLa} offset:{lds_off(t+1)+1024}")
            a(f"ds_read_b128 {vr(Vf[nb]+4,4)}, v{vLa} offset:{lds_off(t+1)+1280}")
            a(f"s_mov_b64 exec, -1")
        for i in range(2, 6):
            a(e[i])
        if t + 1 < 64:
            a(f"{MFMA} {vr(S[nb],16)}, {vr(Kf[nb],4)}, {vr(Q,4)}, {vr(C,16)}")
        if t + 2 == 32:
            a(f"v_add_u32 v{vLa}, 65536, v{vLa}")
            base[0] = 32
        if t + 2 < 64:
            a(f"ds_read_b128 {vr(Kf[b],4)}, v{vLa} offset:{lds_off(t+2)}")
        for i in range(6, 11):
            a(e[i])
        a(f"{SM} {vr(O,16)}, {vr(Vf[b],4)}, {vr(S[b],8)}, v{vIdx}")
        for i in range(11, 16):
            a(e[i])

    def guarded(cond_sgpr, body):
        uid[0] += 1
        L = f"skip{uid[0]}"
        if cond_sgpr is None:
            a(f"s_cmp_lg_u32 s{sFB}, 0")
            a(f"s_cbranch_scc1 {L}")
        else:
            a(f"s_cmp_gt_u32 s{cond_sgpr}, s{sFB}")
            a(f"s_cbranch_scc0 {L}")
        body()
        a.label(L)

    def j_kvdma():
        a(f"buffer_load_dwordx4 v{vL16}, s[{KV}:{KV+3}], m0 offen sc1 lds")
        a(f"s_add_u32 m0, m0, 8192")

    def j_fkv(n):
        a(f"s_waitcnt vmcnt({n})")
        flag(f"s{sT2}")

    def j_level1():
        a(f"s_and_b32 s3, s2, 7")
        a(f"s_lshl_b32 s3, s3, 4")
        a(f"s_lshr_b32 s{sT2}, s2, 4")
        a(f"s_add_u32 s{sT2}, s{sT2}, s3")
        a(f"s_lshr_b32 s4, s{sT2}, 2")
        a(f"s_and_b32 s5, s{sT2}, 3")
        a(f"s_lshl_b32 s3, s4, 7")
        a(f"s_lshl_b32 s3, s3, 4")
        a(f"s_add_u32 s{sT}, s3, {FKV_OFF}")
        poll(16, f"s{sT}")
        a(f"s_lshl_b32 s3, s4, 16")
        a(f"s_lshl_b32 s{sT}, s5, 10")
        a(f"s_add_u32 s3, s3, s{sT}")
        a(f"s_add_u32 s3, s3, {PART_OFF}")
        R = 160
        for m in range(16):
            a(f"buffer_load_dwordx4 {vr(R+4*m,4)}, v{vL16}, {ws()}, s3 offen sc1")
            if m < 15:
                a(f"s_add_u32 s3, s3, 4096")
        a(f"s_lshl_b32 s3, s4, 11")
        a(f"s_lshr_b32 s{sT}, s5, 1")
        a(f"s_lshl_b32 s{sT}, s{sT}, 10")
        a(f"s_add_u32 s3, s3, s{sT}")
        a(f"s_and_b32 s{sT}, s5, 1")
        a(f"s_lshl_b32 s{sT}, s{sT}, 3")
        a(f"s_add_u32 s3, s3, s{sT}")
        a(f"s_add_u32 s6, s3, {KVF_OFF}")
        a(f"s_lshr_b32 s{sT}, s{sT2}, 3")
        a(f"s_lshl_b32 s{sT}, s{sT}, 7")
        a(f"s_and_b32 s{sT2}, s{sT2}, 7")
        a(f"s_lshl_b32 s{sT2}, s{sT2}, 3")
        a(f"s_add_u32 s{sT2}, s{sT2}, s{sT}")
        a(f"s_lshl_b32 s{sT2}, s{sT2}, 4")
        a(f"s_add_u32 s{sT2}, s{sT2}, {FK2_OFF}")

    def j_level1b():
        R = 160
        a("s_waitcnt vmcnt(0)")
        for step in (32, 16, 8, 4):
            for i in range(0, step, 2):
                a(f"v_pk_add_f32 {vr(R+i,2)}, {vr(R+i,2)}, {vr(R+i+step,2)}")
        a(f"v_cvt_pk_bf16_f32 v{R+4}, v{R}, v{R+1}")
        a(f"v_cvt_pk_bf16_f32 v{R+5}, v{R+2}, v{R+3}")
        a(f"buffer_store_dwordx2 {vr(R+4,2)}, v{vL16}, {ws()}, s6 offen sc1")

    def j_bary():
        a("s_waitcnt vmcnt(0)")
        a("s_barrier")

    def j_oa():
        a(f"s_lshl_b32 s3, s7, 6")
        a(f"s_lshl_b32 s3, s3, 4")
        a(f"s_add_u32 s{sT}, s3, {FK2_OFF}")
        poll(8, f"s{sT}")
        a(f"s_lshl_b32 s3, s7, 11")
        a(f"s_add_u32 s3, s3, {KVF_OFF}")
        KF, ND = 160, [176, 192]
        for i in range(4):
            a(f"buffer_load_dwordx4 {vr(KF+4*i,4)}, v{vL16}, {ws()}, s3 offen offset:{i*1024} sc1")

    def j_oab():
        KF, ND = 160, [176, 192]
        a(f"s_lshl_b32 s3, s6, 5")
        a(f"s_add_u32 s3, s3, s7")
        a(f"s_lshl_b32 s3, s3, 10")
        a(f"s_add_u32 s{sT}, s3, {OA_OFF}")
        a(f"s_add_u32 s3, s{sT}, 32768")
        a(f"s_lshl_b32 s{sT2}, s6, 7")
        a(f"s_lshl_b32 s4, s7, 2")
        a(f"s_add_u32 s{sT2}, s{sT2}, s4")
        a(f"s_lshl_b32 s{sT2}, s{sT2}, 4")
        a(f"s_add_u32 s{sT2}, s{sT2}, {FOA_OFF}")
        a("s_waitcnt vmcnt(0)")
        for t in range(2):
            for r in range(2):
                p = PQ + 16 * t + 8 * r
                a(f"{MFMA} {vr(ND[r],16)}, {vr(KF+8*t,4)}, {vr(p,4)}, 0")
                a(f"{MFMA} {vr(ND[r],16)}, {vr(KF+8*t+4,4)}, {vr(p+4,4)}, {vr(ND[r],16)}")
            num, den = (0, 8) if t == 0 else (8, 0)
            for r in range(2):
                a(f"v_add_f32 v{ND[r]+den}, {f32(1e-6)}, v{ND[r]+den}")
            for r in range(2):
                a(f"v_rcp_f32 v{ND[r]+den}, v{ND[r]+den}")
            for r in range(2):
                o = 208 + 8 * t + 4 * r
                for i in range(8):
                    a(f"v_mul_f32 v{ND[r]+num+i}, v{ND[r]+num+i}, v{ND[r]+den}")
                for i in range(4):
                    a(f"v_cvt_pk_bf16_f32 v{o+i}, v{ND[r]+num+2*i}, v{ND[r]+num+2*i+1}")
                a(f"buffer_store_dwordx4 {vr(o,4)}, v{vL16}, {ws()}, {'s3' if r else 's%d' % sT} offen offset:{t*1024} sc1")

    def j_foa():
        a("s_waitcnt vmcnt(0)")
        flag(f"s{sT2}")
        a(f"s_add_u32 s{sT2}, s{sT2}, 2048")
        flag(f"s{sT2}")

    vWs, vWr = TMP + 2, TMP + 3

    def j_wo_setup():
        a(f"v_lshrrev_b32 v6, 2, v0")
        a(f"v_and_b32 v7, 3, v0")
        a(f"v_lshlrev_b32 v7, 4, v7")
        a(f"v_lshl_add_u32 v{vWs}, v6, 10, v7")
        a(f"v_lshrrev_b32 v6, 5, v0")
        a(f"v_bfe_u32 v7, v0, 2, 2")
        a(f"v_lshl_add_u32 v6, v6, 2, v7")
        a(f"v_lshlrev_b32 v6, 6, v6")
        a(f"v_and_b32 v7, 1, v0")
        a(f"v_lshl_add_u32 v6, v7, 5, v6")
        a(f"v_bfe_u32 v7, v0, 4, 1")
        a(f"v_lshl_add_u32 v6, v7, 4, v6")
        a(f"v_bfe_u32 v7, v0, 1, 1")
        a(f"v_lshl_add_u32 v6, v7, 3, v6")
        a(f"s_lshl_b32 s4, s{sW}, 12")
        a(f"s_add_u32 s4, s4, {SCR}")
        a(f"v_add_u32 v{vWr}, s4, v6")
        a(f"s_and_b32 s5, s{sW}, 3")
        a(f"s_lshl_b32 s5, s5, 6")
        a(f"s_lshl_b32 s3, s{sNBo}, 8")
        a(f"s_add_u32 s5, s5, s3")

    def j_wo_dma(r):
        for i in range(4):
            a(f"s_add_u32 m0, s4, {i*1024}")
            a(f"s_add_u32 s3, s5, {(4*r+i)*16384}")
            a(f"buffer_load_dwordx4 v{vWs}, s[{WO}:{WO+3}], s3 offen lds")

    def j_wo_read(r):
        a("s_waitcnt vmcnt(0)")
        for i in range(4):
            for half in range(2):
                a(f"ds_read_b64_tr_b16 {vr(WOF+4*(4*r+i)+2*half,2)}, v{vWr} offset:{i*1024+half*512}")

    def j_oa_dma():
        a(f"s_lshl_b32 s3, s{sRBo}, 7")
        a(f"s_lshl_b32 s3, s3, 4")
        a(f"s_add_u32 s{sT}, s3, {FOA_OFF}")
        poll(16, f"s{sT}")
        a(f"s_lshl_b32 s3, s{sRBo}, 15")
        a(f"s_lshl_b32 s{sT}, s{sW}, 12")
        a(f"s_add_u32 s3, s3, s{sT}")
        a(f"s_add_u32 s3, s3, {OA_OFF}")
        a(f"s_mov_b32 m0, s4")
        for i in range(4):
            a(f"buffer_load_dwordx4 v{vL16}, {ws()}, s3 offen offset:{i*1024} sc1 lds")

    prio = opt.get("prio") or {0: 3, 9: 2, 12: 1, 14: 3, 28: 2, 46: 1, 60: 0}
    W0, WD = opt.get("wo0", 36), opt.get("wod", 3)
    J = dict(fkv=4, l1=9, l1b=12, oa=28, oab=31, foa=35)
    J.update(opt.get("jobs", {}))
    DPT = opt.get("dpt", 2)
    for t in range(64):
        if t in opt.get("tst", (0, 14, 32, 48)):
            st_(f"t{t}")
        if t == 14:
            guarded(None, j_bary)
            guarded(9, lambda: flag(f"s{sT2}"))
        if t in prio:
            a(f"s_setprio {prio[t]}")
        if t == J["fkv"]:
            guarded(8, lambda: j_fkv(min(12, DPT * t)))
        if t == J["l1"]:
            guarded(9, j_level1)
        if t == J["l1b"]:
            guarded(9, j_level1b)
        if t == J["oa"]:
            guarded(8, j_oa)
        if t == J["oab"]:
            guarded(8, j_oab)
        if t == J["foa"]:
            guarded(8, j_foa)
        post = None
        if t * DPT < 12:
            post = lambda: guarded(None, lambda: [j_kvdma() for _ in range(DPT)])
        r, rem = divmod(t - W0, WD)
        if t == W0:
            guarded(None, j_wo_setup)
        if rem == 0 and 1 <= r <= 8:
            guarded(None, lambda: j_wo_read(r - 1))
        if rem == 0 and 0 <= r < 8:
            post = lambda r=r: guarded(None, lambda: j_wo_dma(r))
        if rem == 0 and r == 8:
            post = lambda: guarded(None, j_oa_dma)
        tile(t, post)
    a(f"s_lshl_b32 s3, s{sQB}, 3")
    a(f"s_add_u32 s3, s3, s{sW}")
    a(f"{SM} {vr(O,16)}, {vr(Vf[1]+4,4)}, {vr(S[1]+8,8)}, v{vIdx}")
    a(f"s_lshl_b32 s3, s3, 5")
    a(f"s_add_u32 s3, s3, s{sH}")
    a(f"s_lshl_b32 s{sT2}, s3, 3")
    a(f"s_lshl_b32 s{sT2}, s{sT2}, 4")
    a(f"s_add_u32 s{sT2}, s{sT2}, {FOB_OFF}")
    a(f"s_lshl_b32 s3, s3, 10")
    a(f"s_add_u32 s{sT}, s3, {OB_OFF}")
    a(f"s_cmp_lg_u32 s{sFB}, 0")
    a("s_cbranch_scc1 attn_final")
    a(f"v_add_f32_e64 v{x}, abs(v{O}), abs(v{O+1})")
    a(f"v_add_f32_e64 v{y}, abs(v{O+2}), abs(v{O+3})")
    a(f"v_add_f32_e64 v{x}, v{x}, abs(v{O+4})")
    a(f"v_add_f32_e64 v{y}, v{y}, abs(v{O+5})")
    a(f"v_add_f32_e64 v{x}, v{x}, abs(v{O+6})")
    a(f"v_add_f32_e64 v{y}, v{y}, abs(v{O+7})")
    a(f"v_add_f32 v{x}, v{x}, v{O+8}")
    a(f"v_add_f32 v{x}, v{x}, v{y}")
    a(f"v_cmp_nle_f32 vcc, v{x}, v{vLim}")
    a("s_cbranch_vccz attn_final")
    a(f"s_mov_b32 s{sFB}, 1")
    a(f"v_mov_b32 v{vLa}, v{vL16}")
    a(f"v_mov_b32 v{x}, 0xff800000")
    a(f"s_mov_b32 s3, 64")
    a.label("attn_maxloop")
    a(f"ds_read_b128 {vr(Kf[0],4)}, v{vLa}")
    a(f"v_add_u32 v{vLa}, 2048, v{vLa}")
    a("s_waitcnt lgkmcnt(0)")
    a(f"{MFMA} {vr(S[0],16)}, {vr(Kf[0],4)}, {vr(Q,4)}, 0")
    for i in range(8):
        a(f"v_max3_f32 v{x}, v{x}, v{s0+2*i}, v{s0+2*i+1}")
    a("s_sub_u32 s3, s3, 1")
    a("s_cmp_lg_u32 s3, 0")
    a("s_cbranch_scc1 attn_maxloop")
    a(f"v_mov_b32 v{vLa}, v{vL16}")
    a("s_branch attn_restart")
    a.label("attn_final")
    st_("t64")
    a.nop(12)
    a(f"v_rcp_f32 v{x}, v{O+8}")
    for i in range(8):
        a(f"v_mul_f32 v{O+i}, v{O+i}, v{x}")
    for i in range(4):
        a(f"v_cvt_pk_bf16_f32 v{Q+i}, v{O+2*i}, v{O+2*i+1}")
    a(f"buffer_store_dwordx4 {vr(Q,4)}, v{vL16}, {ws()}, s{sT} offen sc1")
    vO = TMP + 4
    a(f"v_and_b32 v6, 31, v0")
    a(f"v_lshlrev_b32 v6, 11, v6")
    a(f"v_lshrrev_b32 v7, 5, v0")
    a(f"v_lshl_add_u32 v{vO}, v7, 5, v6")
    a(f"s_lshl_b32 s6, s{sRBo}, 16")
    a(f"s_lshr_b32 s3, s{sW}, 2")
    a(f"s_lshl_b32 s3, s3, 10")
    a(f"s_add_u32 s6, s6, s3")
    a(f"s_add_u32 s6, s6, s5")
    a("s_waitcnt vmcnt(0)")
    flag(f"s{sT2}")
    a("s_barrier")
    st_("e1")
    a(f"v_add_u32 v{vLa}, {SCR}, v{vL16}")
    a(f"s_cmp_ge_u32 s{sW}, 4")
    a("s_cbranch_scc0 out_gemm")
    a(f"s_lshl_b32 s3, s{sRBo}, 8")
    a(f"s_lshl_b32 s3, s3, 4")
    a(f"s_add_u32 s{sT}, s3, {FOB_OFF}")
    poll(32, f"s{sT}")
    a(f"s_lshl_b32 s3, s{sRBo}, 15")
    a(f"s_sub_u32 s{sT}, s{sW}, 4")
    a(f"s_lshl_b32 s{sT}, s{sT}, 13")
    a(f"s_add_u32 s3, s3, s{sT}")
    a(f"s_add_u32 s3, s3, {OB_OFF}")
    a(f"s_mov_b32 m0, s{sT}")
    for i in range(8):
        if i == 4:
            a(f"s_add_u32 m0, m0, 4096")
            a(f"s_add_u32 s3, s3, 4096")
        a(f"buffer_load_dwordx4 v{vL16}, {ws()}, s3 offen offset:{(i%4)*1024} sc1 lds")
    a(f"v_mov_b32 v{vLa}, v{vL16}")
    a("s_waitcnt vmcnt(0)")
    a("s_barrier")
    a.label("out_gemm")
    st_("og")
    NB = 8
    OF = 12
    ACCO = 60
    for h in range(NB):
        a(f"ds_read_b128 {vr(OF+4*h,4)}, v{vLa} offset:{h*1024}")
    for h in range(32):
        left = min(31, h + NB - 1) - h
        a(f"s_waitcnt lgkmcnt({left})")
        a(f"{MFMA} {vr(ACCO,16)}, {vr(WOF+4*h,4)}, {vr(OF+4*(h%NB),4)}, {vr(ACCO,16) if h else 0}")
        if h + NB < 32:
            a(f"ds_read_b128 {vr(OF+4*(h%NB),4)}, v{vLa} offset:{(h+NB)*1024}")
    for i in range(8):
        a(f"v_cvt_pk_bf16_f32 v{OF+i}, v{ACCO+2*i}, v{ACCO+2*i+1}")
    osc = opt.get("osc", "")
    for q in range(2):
        a(f"buffer_store_dwordx4 {vr(OF+4*q,4)}, v{vO}, s[{OUT}:{OUT+3}], s6 offen offset:{q*16} {osc}")
    st_.flush()
    a.label("k_end")
    a("s_endpgm")
    return name, a, descriptor(name, 256), "grid=(256,1,1) block=(512,1,1) lds=163840"


def build(opt):
    ref = open(f"cdna_kernels/{NAME}.s.ref").read().split("\n")
    hdr = [l for l in ref if l.startswith(";")]
    hdr = hdr[:[i for i, l in enumerate(hdr) if "Override launch" in l][0]]
    name, a, desc, launch = fused(opt)
    out = "\n".join(hdr) + "\n"
    out += f"; @launch kernel={name} {launch}\n" if opt.get("aslist") else f"; @launch {launch}\n"
    out += '.amdgcn_target "amdgcn-amd-amdhsa--gfx950"\n'
    out += a.text() + desc
    if opt.get("verbose"):
        print(name, "lines", len(a.L), file=sys.stderr)
        for ln, r, t in a.inserted:
            print("  nop", ln, r, t, file=sys.stderr)
    return out


if __name__ == "__main__":
    opt = {"verbose": False}
    path = f"cdna_kernels/{NAME}.s"
    for arg in sys.argv[1:]:
        if "=" in arg:
            k, v = arg.split("=", 1)
            opt[k] = eval(v)
        else:
            path = arg
    open(path, "w").write(build(opt))
    if opt.get("stamp"):
        open(path + ".names", "w").write(repr(STAMP_NAMES))
```
